```python
import torch

def _softmax(x, axis=-1):
    return torch.softmax(x, dim=axis)
def _gelu(x):
    return torch.nn.functional.gelu(x, approximate="tanh")
def _silu(x):
    return torch.nn.functional.silu(x)
def _sigmoid(x):
    return torch.sigmoid(x)
def _layernorm(x, axis=-1, eps=1e-5):
    m = x.mean(dim=axis, keepdim=True)
    v = x.var(dim=axis, keepdim=True, unbiased=False)
    return (x - m) / torch.sqrt(v + eps)
def _scatter_add(tgt, idx, src, axis=0):
    return tgt.clone().index_add_(axis, idx, src)
def _segment_sum(src, seg, n):
    out = torch.zeros((n,) + src.shape[1:], dtype=src.dtype)
    return out.index_add_(0, seg, src)
def _pad(x, pw):
    flat = tuple(v for pair in reversed(pw) for v in pair)
    return torch.nn.functional.pad(x, flat)

kernel_name = 'concat_heads__compressed_kv_cla__ssm_conv_s5__prompt'

def setup_inputs():

    _w = (lambda a: (lambda t: t.to(torch.bfloat16) if t.is_floating_point() else t)(torch.as_tensor(a)))
    def _A_setup():
        B, H, Sq, Sk, D, M = 1, 32, 2048, 2048, 128, 512
        Dc = 4 * D
        return {
            "x": _w((lambda *s: torch.randn(*s, dtype=torch.bfloat16) * 3.2)(B, Sq, M)),
            "c_kv": _w((lambda *s: torch.randn(*s, dtype=torch.bfloat16) * 0.1)(B, Sk, Dc)),
            "w_q": _w((lambda *s: torch.randn(*s, dtype=torch.bfloat16) * 6.4)(M, H, D) * (M ** -0.5)),
            "w_uk": _w((lambda *s: torch.randn(*s, dtype=torch.bfloat16) * 6.4)(Dc, H, D) * (Dc ** -0.5)),
            "w_uv": _w((lambda *s: torch.randn(*s, dtype=torch.bfloat16) * 0.1)(Dc, H, D) * (Dc ** -0.5)),
            "w_o": _w((lambda *s: torch.randn(*s, dtype=torch.bfloat16) * 0.1)(H, D, M) * ((H * D) ** -0.5)),
        }
    _A_in = _A_setup()

    def _B_setup():
        B, S, D = 1, 2048, 512
        P = D
        Lambda_re = -0.5 * (lambda _x: torch.exp(torch.as_tensor(_x)))((lambda *s: torch.randn(*s, dtype=torch.bfloat16) * 0.2)(P))
        Lambda_im = (lambda *s: torch.randn(*s, dtype=torch.bfloat16) * 0.4)(P) * 1.0
        B_re = (lambda *s: torch.randn(*s, dtype=torch.bfloat16) * 0.2)(P, D) * (D ** -0.5)
        B_im = (lambda *s: torch.randn(*s, dtype=torch.bfloat16) * 0.2)(P, D) * (D ** -0.5)
        C_re = (lambda *s: torch.randn(*s, dtype=torch.bfloat16) * 0.2)(D, P) * (P ** -0.5)
        C_im = (lambda *s: torch.randn(*s, dtype=torch.bfloat16) * 0.2)(D, P) * (P ** -0.5)
        log_dt = (lambda *s: torch.randn(*s, dtype=torch.bfloat16) * 0.2)(P) * 0.3 - 2.0
        Dskip = (lambda *s: torch.randn(*s, dtype=torch.bfloat16) * 0.05)(D)
        return {
            "x": _w((lambda *s: torch.randn(*s, dtype=torch.bfloat16) * 0.05)(B, S, D)),
            "Lambda_re": _w(Lambda_re),
            "Lambda_im": _w(Lambda_im),
            "B_re": _w(B_re),
            "B_im": _w(B_im),
            "C_re": _w(C_re),
            "C_im": _w(C_im),
            "log_dt": _w(log_dt),
            "Dskip": _w(Dskip),
        }
    _B_in = _B_setup()

    return {
        "A_x": _A_in["x"],
        "A_c_kv": _A_in["c_kv"],
        "A_w_q": _A_in["w_q"],
        "A_w_uk": _A_in["w_uk"],
        "A_w_uv": _A_in["w_uv"],
        "A_w_o": _A_in["w_o"],
        "B_x": _B_in["x"],
        "B_Lambda_re": _B_in["Lambda_re"],
        "B_Lambda_im": _B_in["Lambda_im"],
        "B_B_re": _B_in["B_re"],
        "B_B_im": _B_in["B_im"],
        "B_C_re": _B_in["C_re"],
        "B_C_im": _B_in["C_im"],
        "B_log_dt": _B_in["log_dt"],
        "B_Dskip": _B_in["Dskip"],
    }

def reference(A_x, A_c_kv, A_w_q, A_w_uk, A_w_uv, A_w_o, B_x, B_Lambda_re, B_Lambda_im, B_B_re, B_B_im, B_C_re, B_C_im, B_log_dt, B_Dskip):
    def _A_ref(x, c_kv, w_q, w_uk, w_uv, w_o):
        B, Sq, M = x.shape[0], x.shape[1], x.shape[2]
        Sk = c_kv.shape[1]
        H, D = w_q.shape[1], w_q.shape[2]
        q = torch.einsum("bqm,mhd->bhqd", x, w_q)
        k = torch.einsum("bkc,chd->bhkd", c_kv, w_uk)
        v = torch.einsum("bkc,chd->bhkd", c_kv, w_uv)
        scores = torch.einsum("bhqd,bhkd->bhqk", q, k) * (D ** -0.5)
        off = Sk - Sq
        qi = torch.arange(Sq)[:, None]
        kj = torch.arange(Sk)[None, :]
        cmask = kj <= (qi + off)
        scores = torch.where(cmask[None, None], scores, -1e9)
        p = _softmax(scores, axis=-1)
        ctx = torch.einsum("bhqk,bhkd->bhqd", p, v)
        return torch.einsum("bhqd,hdm->bqm", ctx, w_o)

    def _B_ref(x, Lambda_re, Lambda_im, B_re, B_im, C_re, C_im, log_dt, Dskip):
        Bsz, L, H = x.shape
        Lam = Lambda_re + 1j * Lambda_im
        Bmat = B_re + 1j * B_im
        Cmat = C_re + 1j * C_im
        dt = torch.exp(log_dt)
        Lam_bar = torch.exp(dt * Lam)
        B_bar = ((Lam_bar - 1.0) / Lam)[:, None] * Bmat
        Bu = torch.einsum("bld,pd->blp", x + 0j, B_bar)
        h = torch.zeros_like(Bu[:, 0, :])
        hs = []
        for t in range(L):
            h = Lam_bar[None, :] * h + Bu[:, t, :]
            hs.append(h)
        hseq = torch.stack(hs, 1)
        y = 2.0 * torch.einsum("blp,dp->bld", hseq, Cmat).real + x * Dskip[None, None, :]
        return y

    a = _A_ref(A_x, A_c_kv, A_w_q, A_w_uk, A_w_uv, A_w_o)
    b = _B_ref(B_x, B_Lambda_re, B_Lambda_im, B_B_re, B_B_im, B_C_re, B_C_im, B_log_dt, B_Dskip)
    return torch.concatenate([a, b], axis=-1)
```

```python
KF_OFF  = 0
VF_OFF  = 16 << 20
CTX_OFF = 32 << 20
BU_OFF  = 48 << 20
E32_OFF = 56 << 20
TAB_OFF = 57 << 20
HF_OFF  = 58 << 20

KA = dict(A_x=0, A_c_kv=8, A_w_q=16, A_w_uk=24, A_w_uv=32, A_w_o=40, B_x=48, B_Lre=56, B_Lim=64,
          B_Bre=72, B_Bim=80, B_Cre=88, B_Cim=96, B_logdt=104, B_Dskip=112, out=120, dbg=128, ws=136)

def vr(b, n=1):
    return f"v{b}" if n == 1 else f"v[{b}:{b+n-1}]"
def ar(b, n=1):
    return f"a{b}" if n == 1 else f"a[{b}:{b+n-1}]"
def sr(b, n=1):
    return f"s{b}" if n == 1 else f"s[{b}:{b+n-1}]"

class Asm:
    def __init__(self):
        self.lines = []
        self.vmq = []
        self.lgq = []
        self.uid = 0
    def e(self, s):
        self.lines.append("  " + s)
    def label(self, s):
        self.lines.append(s + ":")
    def comment(self, s):
        self.lines.append("  ; " + s)
    def vm(self, s, tag=None):
        self.e(s); self.vmq.append(tag)
    def ds(self, s, tag=None):
        self.e(s); self.lgq.append(tag)
    def _cnt(self, q, tag):
        idx = None
        for i, t in enumerate(q):
            if t == tag: idx = i
        if idx is None: return None
        return len(q) - 1 - idx
    def wait(self, vm=None, lg=None):
        parts = []
        if vm is not None:
            tags = vm if isinstance(vm, (list, tuple)) and not isinstance(vm, str) and (len(vm) == 0 or isinstance(vm[0], (tuple, str))) and isinstance(vm, list) else [vm]
            ns = [self._cnt(self.vmq, t) for t in tags]
            ns = [n for n in ns if n is not None]
            if ns:
                n = min(ns)
                self.vmq = self.vmq[len(self.vmq) - n:] if n > 0 else []
                parts.append(f"vmcnt({min(n, 63)})")
        if lg is not None:
            tags = lg if isinstance(lg, list) else [lg]
            ns = [self._cnt(self.lgq, t) for t in tags]
            ns = [n for n in ns if n is not None]
            if ns:
                n = min(ns)
                self.lgq = self.lgq[len(self.lgq) - n:] if n > 0 else []
                parts.append(f"lgkmcnt({min(n, 15)})")
        if parts:
            self.e("s_waitcnt " + " ".join(parts))
    def wait_all(self, vm=True, lg=True):
        parts = []
        if vm: parts.append("vmcnt(0)"); self.vmq = []
        if lg: parts.append("lgkmcnt(0)"); self.lgq = []
        self.e("s_waitcnt " + " ".join(parts))
    def newlabel(self, p="L"):
        self.uid += 1
        return f"{p}_{self.uid}"
    def text(self):
        return "\n".join(self.lines) + "\n"

def srd(a, s, base_lo, base_hi, nbytes):
    a.e(f"s_mov_b32 s{s}, s{base_lo}")
    a.e(f"s_and_b32 s{s+1}, s{base_hi}, 0xffff")
    a.e(f"s_mov_b32 s{s+2}, {nbytes}")
    a.e(f"s_mov_b32 s{s+3}, 0x00020000")

def srd_off(a, s, base_lo, base_hi, off, nbytes):
    a.e(f"s_add_u32 s{s}, s{base_lo}, {off}")
    a.e(f"s_addc_u32 s{s+1}, s{base_hi}, 0")
    a.e(f"s_and_b32 s{s+1}, s{s+1}, 0xffff")
    a.e(f"s_mov_b32 s{s+2}, {nbytes}")
    a.e(f"s_mov_b32 s{s+3}, 0x00020000")

def kernel_wrap(name, body, vgpr, accum, sgpr=102):
    return f"""
.text
.globl {name}
.p2align 8
.type {name},@function
{name}:
{body}
.section .rodata,"a"
.p2align 6
.amdhsa_kernel {name}
  .amdhsa_next_free_vgpr {vgpr}
  .amdhsa_next_free_sgpr {sgpr}
  .amdhsa_accum_offset {accum}
  .amdhsa_group_segment_fixed_size 0
  .amdhsa_kernarg_size 144
  .amdhsa_user_sgpr_count 2
  .amdhsa_user_sgpr_kernarg_segment_ptr 1
  .amdhsa_system_sgpr_workgroup_id_x 1
.end_amdhsa_kernel
"""

def mfma(d, a_, b_, c):
    return f"v_mfma_f32_32x32x16_bf16 {d}, {a_}, {b_}, {c}"
```

```python
from common import *
import struct

S_WAVE, S_MB, S_U = 3, 4, 5
S_T0, S_T1, S_T2, S_T3 = 6, 7, 8, 9
S_PB = 10
P = dict(A_x=16, ckv=18, wq=20, wuk=22, wuv=24, wo=26, Bx=28, Lre=30, Lim=32, Bre=34, Bim=36, Cre=38, Cim=40,
         logdt=42, Dskip=44, out=46, dbg=48, ws=50)
SRD_A, SRD_W, SRD_BR, SRD_O, SRD_A2, SRD_L0, SRD_L1, SRD_L2, SRD_BI = 52, 56, 60, 64, 68, 72, 76, 80, 44
S_UO = 84
S_CU0 = 93
S_UST = 94
S_U9 = 95
S_ROT = 14
S_T4 = 15
S_AB = 100
S_AL = 101

LOG2E = 1.4426950408889634
INV2PI = 0.15915494309189535
def f2u(x):
    return "0x%08x" % struct.unpack("<I", struct.pack("<f", x))[0]

FR0 = 192
NF = 8
TMP = 224
RING = 5
LDS_AST = RING * 16384
LDS_TAB = LDS_AST + 65536
LDS_BYTES = LDS_TAB + 6144
DIAG = False
DIAG_OFF = 63 << 20

def m16(d, a_, b_, c):
    return f"v_mfma_f32_16x16x32_bf16 {d}, {a_}, {b_}, {c}"

def gen_type(a, typ):
    isS = typ.startswith("S")
    kv = typ[-2]
    if not isS:
        phases = [(kv, 4, 0, 0), (kv, 2, 4, 128), (kv, 2, 6, 0), (kv, 1, 8, 64)]
    else:
        phases = [('S', 4, 0, 0), ('S', 2, 4, 128), ('S', 2, 6, 0), (kv, 1, 0, 64)]
    T = TMP
    if not isS:
        V_TR = [[240, 241], [242, 243]]; V_DQ = [244, 245, 246, 247]; V_OO = [248, 249]; V_SQ = [250, 251]; V_AR = [252, 253]
    else:
        V_SR = [[[240, 241], [242, 243]], [[244, 245], [246, 247]]]
        V_SQ = [248, 249]; V_AR = [250, 251]
        V_TR = [[96, 97], [98, 99]]; V_DQ = [100, 101, 102, 103]; V_OO = [104, 105]
        V_BO = T + 12; V_EO = T + 13; V_CT = T + 14
    def lane_id(r):
        a.e(f"v_mbcnt_lo_u32_b32 v{r}, -1, 0")
        a.e(f"v_mbcnt_hi_u32_b32 v{r}, -1, v{r}")
    def setup_kv_regs(L, X, Y):
        lane_id(L)
        a.e(f"v_lshrrev_b32 v{X}, 4, v{L}")
        a.e(f"v_lshlrev_b32 v{V_TR[0][0]}, 9, v{X}")
        a.e(f"v_bfe_u32 v{Y}, v{L}, 2, 2")
        a.e(f"v_lshl_add_u32 v{V_TR[0][0]}, v{Y}, 6, v{V_TR[0][0]}")
        a.e(f"v_and_b32 v{Y}, 3, v{L}")
        a.e(f"v_lshl_add_u32 v{V_TR[0][0]}, v{Y}, 3, v{V_TR[0][0]}")
        a.e(f"v_and_b32 v{X}, 1, v{X}")
        a.e(f"v_lshl_add_u32 v{V_TR[0][0]}, v{X}, 5, v{V_TR[0][0]}")
        a.e(f"v_xor_b32 v{V_TR[0][1]}, 32, v{V_TR[0][0]}")
        a.e(f"v_add_u32 v{V_TR[1][0]}, 0x10000, v{V_TR[0][0]}")
        a.e(f"v_add_u32 v{V_TR[1][1]}, 0x10000, v{V_TR[0][1]}")
        a.e(f"v_lshrrev_b32 v{X}, 5, v{L}")
        a.e(f"v_lshlrev_b32 v{X}, 1, v{X}")
        a.e(f"v_xor_b32 v{Y}, v{X}, v{Y}")
        a.e(f"v_lshlrev_b32 v{V_DQ[0]}, 4, v{Y}")
        a.e(f"v_lshrrev_b32 v{X}, 2, v{L}")
        a.e(f"v_lshl_add_u32 v{V_DQ[0]}, v{X}, 13, v{V_DQ[0]}")
        for q in range(1, 4):
            a.e(f"v_add_u32 v{V_DQ[q]}, {16*q*8192 - 1024*q}, v{V_DQ[0]}")
        FS = 1024 if kv == 'K' else 4096
        a.e(f"v_and_b32 v{X}, 15, v{L}")
        a.e(f"v_lshlrev_b32 v{X}, 4, v{X}")
        a.e(f"v_bfe_u32 v{Y}, v{L}, 4, 1")
        a.e(f"v_lshl_add_u32 v{X}, v{Y}, 9, v{X}")
        a.e(f"v_lshrrev_b32 v{Y}, 5, v{L}")
        a.e(f"v_lshl_add_u32 v{X}, v{Y}, {FS.bit_length()-1}, v{X}")
        a.e(f"s_lshl_b32 s{S_T0}, s{S_MB}, 16")
        a.e(f"s_lshl_b32 s{S_T1}, s{S_WAVE}, 14")
        a.e(f"s_add_u32 s{S_T0}, s{S_T0}, s{S_T1}")
        a.e(f"v_add_u32 v{V_OO[0]}, s{S_T0}, v{X}")
        a.e(f"v_add_u32 v{V_OO[1]}, 8192, v{V_OO[0]}")

    L = T + 15; X = T + 10; Y = T + 11
    a.e(f"v_and_b32 v{L}, 63, v0")
    a.e(f"v_lshrrev_b32 v{T}, 3, v{L}")
    a.e(f"v_and_b32 v{T+1}, 7, v{L}")
    for q in range(2):
        a.e(f"v_add_u32 v{T+2}, {8*q}, v{T}")
        a.e(f"v_bfe_u32 v{T+3}, v{T+2}, 1, 3")
        a.e(f"v_xor_b32 v{T+3}, v{T+3}, v{T+1}")
        a.e(f"v_lshlrev_b32 v{T+3}, 4, v{T+3}")
        a.e(f"v_lshl_add_u32 v{T+3}, v{T+2}, 10, v{T+3}")
        a.e(f"v_subrev_u32 v{V_SQ[q]}, {1024*q}, v{T+3}")
    a.e(f"s_lshl_b32 s{S_T0}, s{S_MB}, 18")
    a.e(f"s_lshl_b32 s{S_T1}, s{S_WAVE}, 16")
    a.e(f"s_add_u32 s{S_AB}, s{S_T0}, s{S_T1}")
    a.e(f"s_lshl_b32 s{S_AL}, s{S_WAVE}, 14")
    a.e(f"s_add_u32 s{S_AL}, s{S_AL}, {LDS_AST}")
    a.e(f"v_and_b32 v{X}, 15, v{L}")
    a.e(f"v_lshlrev_b32 v{T}, 7, v{X}")
    a.e(f"v_bfe_u32 v{T+1}, v{L}, 1, 3")
    a.e(f"v_lshrrev_b32 v{T+2}, 4, v{L}")
    a.e(f"v_xor_b32 v{T+1}, v{T+1}, v{T+2}")
    a.e(f"v_lshl_add_u32 v{T+4}, v{T+1}, 4, v{T}")
    a.e(f"v_add_u32 v{V_AR[0]}, s{S_AL}, v{T+4}")
    a.e(f"v_xor_b32 v{V_AR[1]}, 64, v{V_AR[0]}")
    if isS:
        a.e(f"v_mov_b32 v{V_SR[0][0][0]}, v{T+4}")
    wp = P['wuk'] if kv == 'K' else P['wuv']
    srd(a, SRD_W, wp, wp + 1, 512 * 4096 * 2)
    a.e(f"s_lshl_b32 s{S_T3}, s{S_WAVE}, 12")
    if not isS:
        srd(a, SRD_A, P['ckv'], P['ckv'] + 1, 2048 * 512 * 2)
        if kv == 'V':
            a.e(f"s_sub_u32 s{S_U9}, s{S_U}, 14")
        else:
            a.e(f"s_mov_b32 s{S_U9}, s{S_U}")
        a.e(f"s_lshl_b32 s{S_UST}, s{S_U9}, 3")
        a.e(f"s_add_u32 s{S_U9}, s{S_U9}, 112")
        unit_expr = [(S_UST, i) for i in range(8)] + [(S_U9, 0)]
    else:
        srd(a, SRD_A, P['Bx'], P['Bx'] + 1, 2048 * 512 * 2)
        srd(a, SRD_BR, P['Bre'], P['Bre'] + 1, 512 * 512 * 2)
        srd(a, SRD_BI, P['Bim'], P['Bim'] + 1, 512 * 512 * 2)
        a.e(f"s_and_b32 s{S_U9}, s{S_U}, 1")
        a.e(f"s_add_u32 s{S_U9}, s{S_U9}, 126")
        a.e(f"s_sub_u32 s{S_CU0}, s{S_U}, 28")
        a.e(f"s_lshl_b32 s{S_CU0}, s{S_CU0}, 3")
        unit_expr = [(S_U9, 0)]
    for pi, (kind, wd, u0, ab) in enumerate(phases):
        d = S_PB + pi
        a.e(f"s_and_b32 s{S_T1}, s{S_WAVE}, {wd-1}")
        if kind != 'S':
            sreg, off = unit_expr[u0]
            a.e(f"s_add_u32 s{S_T1}, s{S_T1}, s{sreg}")
            if off: a.e(f"s_add_u32 s{S_T1}, s{S_T1}, {off}")
            a.e(f"s_lshl_b32 s{d}, s{S_T1}, 6")
        else:
            a.e(f"s_add_u32 s{S_T1}, s{S_T1}, s{S_CU0}")
            if u0: a.e(f"s_add_u32 s{S_T1}, s{S_T1}, {u0}")
            a.e(f"s_lshl_b32 s{d}, s{S_T1}, 14")
    if not isS:
        setup_kv_regs(L, X, Y)

    nst = [0]
    VST = 254
    def stamp():
        if not DIAG: return
        if nst[0] > 0:
            a.e("s_waitcnt lgkmcnt(0)"); a.lgq = []
            a.e(f"v_writelane_b32 v{VST}, s98, {nst[0]-1}")
        a.e("s_memtime s[98:99]")
        nst[0] += 1
    def stamp_end():
        if not DIAG: return
        stamp()
        a.e("s_waitcnt vmcnt(0)")
        stamp()
        a.e("s_waitcnt lgkmcnt(0)")
        a.e(f"v_writelane_b32 v{VST}, s98, {nst[0]-1}")
        lane_id(0)
        a.e("v_lshlrev_b32 v0, 2, v0")
        a.e(f"s_lshl_b32 s6, s2, 2")
        a.e(f"s_add_u32 s6, s6, s{S_WAVE}")
        a.e(f"s_lshl_b32 s6, s6, 8")
        a.e(f"s_add_u32 s6, s6, {DIAG_OFF}")
        a.e(f"buffer_store_dword v{VST}, v0, s[{SRD_O}:{SRD_O+3}], s6 offen")
    stamp()

    slots = []
    for pi, (kind, wd, u0, ab) in enumerate(phases):
        for sl in range(2 * wd):
            slots.append((pi, sl))
    NS = len(slots); R = RING
    def issue_dma(n):
        pi, sl = slots[n]
        kind, wd, u0, ab = phases[pi]
        base = (n % R) * 16384
        lg = {4: 2, 2: 1, 1: 0}[wd]
        a.e(f"s_lshr_b32 s{S_T0}, s{S_WAVE}, {lg}")
        a.e(f"s_add_u32 s{S_T0}, s{S_T0}, s{S_ROT}")
        a.e(f"s_add_u32 s{S_T0}, s{S_T0}, {sl * (4 // wd)}")
        a.e(f"s_and_b32 s{S_T0}, s{S_T0}, 7")
        a.e(f"s_lshl_b32 s{S_T0}, s{S_T0}, {19 if kind != 'S' else 7}")
        a.e(f"s_add_u32 m0, s{S_T3}, {base}")
        a.e(f"s_add_u32 s{S_T0}, s{S_T0}, s{S_PB+pi}")
        for q in range(4):
            if kind == 'S':
                sd = SRD_BR if q < 2 else SRD_BI; vq = V_SQ[q & 1]; io = 1024 * (q & 1)
                if q == 2:
                    a.e(f"s_add_u32 m0, s{S_T3}, {base + 2048}")
                    a.e("s_nop 0")
            else:
                sd = SRD_W; vq = V_DQ[q]; io = 1024 * q
            a.vm(f"buffer_load_dwordx4 v{vq}, s[{sd}:{sd+3}], s{S_T0} offen offset:{io} lds", ('dma', n))
    def a_dma(c, sdA, tagp):
        a.e(f"s_add_u32 s{S_T4}, s{S_ROT}, {c}")
        a.e(f"s_and_b32 s{S_T4}, s{S_T4}, 7")
        a.e(f"s_lshl_b32 s{S_T4}, s{S_T4}, 7")
        a.e(f"s_add_u32 s{S_T4}, s{S_T4}, s{S_AB}")
        for qq in range(4):
            a.e(f"s_add_u32 m0, s{S_AL}, {(c & 1) * 8192 + qq * 2048}")
            if qq: a.e(f"s_add_u32 s{S_T4}, s{S_T4}, 16384")
            else: a.e("s_nop 0")
            for q in range(2):
                a.vm(f"buffer_load_dwordx4 v{V_SQ[q]}, s[{sdA}:{sdA+3}], s{S_T4} offen offset:{1024*q} lds", (tagp, c))
    def a_read(c, tagp):
        a.wait(vm=(tagp, c))
        for up in range(2):
            for mt in range(4):
                r = ((2 * c + up) * 4 + mt) * 4
                a.ds(f"ds_read_b128 a[{r}:{r+3}], v{V_AR[up]} offset:{(c & 1) * 8192 + mt * 2048}", (tagp + 'r', c))

    if isS:
        srd(a, SRD_L0, P['Lre'], P['Lre'] + 1, 1024)
        srd(a, SRD_L1, P['Lim'], P['Lim'] + 1, 1024)
        srd(a, SRD_L2, P['logdt'], P['logdt'] + 1, 1024)
        r0 = T + 6
        a.e(f"s_and_b32 s{S_T0}, s{S_WAVE}, 1")
        a.e(f"s_lshl_b32 s{S_T0}, s{S_T0}, 6")
        a.e(f"s_lshl_b32 s{S_T1}, s{S_CU0}, 4")
        a.e(f"s_add_u32 s{S_T1}, s{S_T1}, s{S_T0}")
        a.e(f"s_lshl_b32 s{S_T2}, s{S_T1}, 1")
        a.e(f"v_lshlrev_b32 v{r0+3}, 1, v{L}")
        a.vm(f"buffer_load_ushort v{r0}, v{r0+3}, s[{SRD_L0}:{SRD_L0+3}], s{S_T2} offen", 'par')
        a.vm(f"buffer_load_ushort v{r0+1}, v{r0+3}, s[{SRD_L1}:{SRD_L1+3}], s{S_T2} offen", 'par')
        a.vm(f"buffer_load_ushort v{r0+2}, v{r0+3}, s[{SRD_L2}:{SRD_L2+3}], s{S_T2} offen", 'par')
    issue_dma(0)
    a_dma(0, SRD_A, 'A')
    a_dma(1, SRD_A, 'A')
    issue_dma(1)
    dma_next = 2
    srd(a, SRD_O, P['ws'], P['ws'] + 1, 64 << 20)
    obase = KF_OFF if kv == 'K' else VF_OFF
    osh = 11 if kv == 'K' else 10
    for i, (sreg, off) in enumerate(unit_expr):
        a.e(f"s_add_u32 s{S_T0}, s{sreg}, {off}")
        a.e(f"s_lshr_b32 s{S_T1}, s{S_T0}, 2")
        a.e(f"s_lshl_b32 s{S_T1}, s{S_T1}, 19")
        a.e(f"s_and_b32 s{S_T0}, s{S_T0}, 3")
        a.e(f"s_lshl_b32 s{S_T0}, s{S_T0}, {osh}")
        a.e(f"s_add_u32 s{S_T0}, s{S_T0}, s{S_T1}")
        a.e(f"s_add_u32 s{S_UO+i}, s{S_T0}, {obase}")

    def s_pow(n, ra, rb, rd, rt):
        a.e(f"v_mul_f32 v{rt}, {f2u(float(n))}, v{ra}")
        a.e(f"v_mul_f32 v{rd+1}, {f2u(float(n))}, v{rb}")
        a.e(f"v_exp_f32 v{rt}, v{rt}")
        a.e(f"v_fract_f32 v{rd+1}, v{rd+1}")
        a.e(f"v_cos_f32 v{rd}, v{rd+1}")
        a.e(f"v_sin_f32 v{rd+1}, v{rd+1}")
        a.e("s_nop 0")
        a.e(f"v_mul_f32 v{rd}, v{rd}, v{rt}")
        a.e(f"v_mul_f32 v{rd+1}, v{rd+1}, v{rt}")

    if isS:
        srd(a, SRD_A2, P['ckv'], P['ckv'] + 1, 2048 * 512 * 2)
        a.e(f"v_and_b32 v{X}, 15, v{L}")
        a.e(f"v_xor_b32 v{V_SR[0][0][1]}, 64, v{V_SR[0][0][0]}")
        for up in range(2):
            a.e(f"v_add_u32 v{V_SR[0][1][up]}, 2048, v{V_SR[0][0][up]}")
        for t in range(2):
            for up in range(2):
                a.e(f"v_add_u32 v{V_SR[1][t][up]}, 0x10000, v{V_SR[0][t][up]}")
        a.e(f"s_lshl_b32 s{S_T0}, s{S_MB}, 3")
        a.e(f"s_lshl_b32 s{S_T1}, s{S_WAVE}, 1")
        a.e(f"s_add_u32 s{S_T0}, s{S_T0}, s{S_T1}")
        a.e(f"s_lshl_b32 s{S_T1}, s{S_T0}, 17")
        a.e(f"v_lshlrev_b32 v{V_BO}, 4, v{X}")
        a.e(f"v_bfe_u32 v{T+1}, v{L}, 4, 1")
        a.e(f"v_lshl_add_u32 v{V_BO}, v{T+1}, 9, v{V_BO}")
        a.e(f"v_lshrrev_b32 v{T+1}, 5, v{L}")
        a.e(f"v_lshl_add_u32 v{V_BO}, v{T+1}, 10, v{V_BO}")
        a.e(f"v_add_u32 v{V_BO}, s{S_T1}, v{V_BO}")
        a.e(f"s_lshl_b32 s{S_T1}, s{S_T0}, 12")
        a.e(f"v_lshlrev_b32 v{V_EO}, 3, v{X}")
        a.e(f"v_add_u32 v{V_EO}, s{S_T1}, v{V_EO}")
        a.e(f"v_lshlrev_b32 v{V_CT}, 3, v{X}")
        a.e(f"v_add_u32 v{V_CT}, {LDS_TAB}, v{V_CT}")
        r0 = T + 6
        a.e(f"s_and_b32 s{S_T0}, s{S_WAVE}, 1")
        a.e(f"s_lshl_b32 s{S_T0}, s{S_T0}, 6")
        a.e(f"s_lshl_b32 s{S_T1}, s{S_CU0}, 4")
        a.e(f"s_add_u32 s{S_T1}, s{S_T1}, s{S_T0}")
        a.e(f"s_lshl_b32 s{S_T2}, s{S_T1}, 3")
        a.e(f"s_add_u32 s{S_T2}, s{S_T2}, {TAB_OFF}")
        a.e(f"v_lshlrev_b32 v{Y}, 3, v{L}")
        a.e(f"s_lshl_b32 s{S_T0}, s{S_T0}, 3")
        a.e(f"s_add_u32 s{S_T0}, s{S_T0}, {LDS_TAB}")
        a.e(f"v_add_u32 v{X}, s{S_T0}, v{Y}")
        a.wait(vm='par')
        a.e(f"v_lshlrev_b32 v{r0}, 16, v{r0}")
        a.e(f"v_lshlrev_b32 v{r0+1}, 16, v{r0+1}")
        a.e(f"v_lshlrev_b32 v{r0+2}, 16, v{r0+2}")
        a.e(f"v_mul_f32 v{r0+2}, {f2u(LOG2E)}, v{r0+2}")
        a.e(f"v_exp_f32 v{r0+2}, v{r0+2}")
        a.e("s_nop 0")
        a.e(f"v_cvt_pk_bf16_f32 v{r0+2}, v{r0+2}, v{r0+2}")
        a.e(f"v_lshlrev_b32 v{r0+3}, 16, v{r0+2}")
        a.e(f"v_mul_f32 v{r0+2}, v{r0+3}, v{r0}")
        a.e(f"v_mul_f32 v{r0+3}, v{r0+3}, v{r0+1}")
        a.e(f"v_mul_f32 v{r0+2}, {f2u(LOG2E)}, v{r0+2}")
        a.e(f"v_mul_f32 v{r0+3}, {f2u(INV2PI)}, v{r0+3}")
        lb = a.newlabel("K1tb"); le = a.newlabel("K1te")
        a.e(f"s_cmp_ge_u32 s{S_WAVE}, 2")
        a.e(f"s_cbranch_scc1 {lb}")
        vq0 = list(a.vmq); lq0 = list(a.lgq)
        def gst(kidx, rd):
            a.e(f"s_add_u32 s{S_T1}, s{S_T2}, {kidx*4096}")
            a.e(f"buffer_store_dwordx2 v[{rd}:{rd+1}], v{Y}, s[{SRD_O}:{SRD_O+3}], s{S_T1} offen")
        s_pow(1, r0 + 2, r0 + 3, T, T + 4)
        a.e(f"ds_write_b64 v{X}, v[{T}:{T+1}]")
        gst(0, T)
        a.e(f"v_mul_f32 v{T+4}, v{r0}, v{r0}")
        a.e(f"v_fmac_f32 v{T+4}, v{r0+1}, v{r0+1}")
        a.e(f"v_rcp_f32 v{T+4}, v{T+4}")
        a.e(f"v_add_f32 v{T+5}, -1.0, v{T}")
        a.e(f"v_add_f32 v{T+4}, v{T+4}, v{T+4}")
        a.e(f"v_mul_f32 v{T+2}, v{T+5}, v{r0}")
        a.e(f"v_fmac_f32 v{T+2}, v{T+1}, v{r0+1}")
        a.e(f"v_mul_f32 v{T+3}, v{T+1}, v{r0}")
        a.e(f"v_fma_f32 v{T+3}, -v{T+5}, v{r0+1}, v{T+3}")
        a.e(f"v_mul_f32 v{T+2}, v{T+2}, v{T+4}")
        a.e(f"v_mul_f32 v{T+3}, v{T+3}, v{T+4}")
        gst(6, T + 2)
        s_pow(16, r0 + 2, r0 + 3, T, T + 4)
        a.e(f"ds_write_b64 v{X}, v[{T}:{T+1}] offset:1024")
        s_pow(12, r0 + 2, r0 + 3, T + 2, T + 4)
        a.e(f"ds_write_b64 v{X}, v[{T+2}:{T+3}] offset:2048")
        s_pow(8, r0 + 2, r0 + 3, T, T + 4)
        a.e(f"ds_write_b64 v{X}, v[{T}:{T+1}] offset:3072")
        gst(1, T)
        s_pow(4, r0 + 2, r0 + 3, T + 2, T + 4)
        a.e(f"ds_write_b64 v{X}, v[{T+2}:{T+3}] offset:4096")
        a.e(f"v_mov_b32 v{T+4}, 1.0")
        a.e(f"v_mov_b32 v{T+5}, 0")
        a.e(f"ds_write_b64 v{X}, v[{T+4}:{T+5}] offset:5120")
        gst(1, T)
        a.e("s_waitcnt lgkmcnt(0)")
        a.e(f"s_branch {le}")
        a.label(lb)
        for kidx, n in [(2, 32), (3, 512), (4, 1024), (5, 1536)]:
            rd = T if kidx % 2 == 0 else T + 2
            s_pow(n, r0 + 2, r0 + 3, rd, T + 4)
            gst(kidx, rd)
        a.label(le)
        a.vmq += ['tab'] * 4
        a.e(f"v_lshrrev_b32 v{L}, 4, v{L}")
        a.e(f"v_lshl_add_u32 v{L}, v{L}, 10, v{V_CT}")

    tmpi = [0]
    def acc_of(ab, u, t, mt):
        return ab + u * 32 + (t * 4 + mt) * 4
    def kv_unit_items(kind, ab, u, uidx):
        items = []
        for kt in range(2):
            for x in range(2):
                def f(kt=kt, x=x):
                    t = T + 4 * (tmpi[0] % 3); tmpi[0] += 1
                    if kind == 'K':
                        mt = 2 * kt + x
                        r1, r2 = acc_of(ab, u, 0, mt), acc_of(ab, u, 1, mt)
                    else:
                        r1, r2 = acc_of(ab, u, x, 2 * kt), acc_of(ab, u, x, 2 * kt + 1)
                    a.e(f"v_cvt_pk_bf16_f32 v{t}, v{r1}, v{r1+1}")
                    a.e(f"v_cvt_pk_bf16_f32 v{t+1}, v{r1+2}, v{r1+3}")
                    a.e(f"v_cvt_pk_bf16_f32 v{t+2}, v{r2}, v{r2+1}")
                    a.e(f"v_cvt_pk_bf16_f32 v{t+3}, v{r2+2}, v{r2+3}")
                    a.vm(f"buffer_store_dwordx4 v[{t}:{t+3}], v{V_OO[kt]}, s[{SRD_O}:{SRD_O+3}], s{S_UO+uidx} offen offset:{256*x}", 'st')
                items.append(f)
        return items
    def cfma(d, x, l, b_re, b_im, t):
        a.e(f"v_fma_f32 v{t}, v{x}, v{l}, v{b_re}")
        a.e(f"v_fma_f32 v{t+1}, v{x}, v{l+1}, v{b_im}")
        a.e(f"v_fma_f32 v{d}, -v{x+1}, v{l+1}, v{t}")
        a.e(f"v_fma_f32 v{d+1}, v{x+1}, v{l}, v{t+1}")
    def s_unit_items(ab, u, ui):
        items = []
        G, AC, TT = T + 6, T + 8, T + 10
        def fc():
            a.ds(f"ds_read_b64 v[{T}:{T+1}], v{V_CT} offset:{ui*128}", ('ct', ui))
            a.ds(f"ds_read_b64 v[{T+4}:{T+5}], v{V_CT} offset:{1024+ui*128}", ('ct', ui))
            a.ds(f"ds_read_b64 v[{T+2}:{T+3}], v{T+15} offset:{2048+ui*128}", ('ct', ui))
        items.append(fc)
        def st(part):
            def f():
                a.e(f"s_add_u32 s{S_T2}, s{S_CU0}, {ui}")
                a.e(f"s_lshr_b32 s{S_T2}, s{S_T2}, 1")
                a.e(f"s_lshl_b32 s{S_T2}, s{S_T2}, 13")
                for kt in range(2):
                    a.e(f"s_add_u32 s{S_T1}, s{S_T2}, {BU_OFF + part*4096 + kt*131072 + (ui&1)*256}")
                    for x in range(2):
                        r = acc_of(ab, u, part, 2 * kt + x)
                        a.vm(f"buffer_store_dwordx4 v[{r}:{r+3}], v{V_BO}, s[{SRD_O}:{SRD_O+3}], s{S_T1} offen offset:{2048*x}", 'st')
            return f
        items.append(st(0)); items.append(st(1))
        for kt in range(2):
            for x in range(2):
                R_ = acc_of(ab, u, 0, 2 * kt + x); I_ = acc_of(ab, u, 1, 2 * kt + x)
                D_ = AC if x == 0 else G
                def f1(R_=R_, I_=I_, D_=D_):
                    a.wait(lg=('ct', ui))
                    a.e(f"v_fma_f32 v{TT}, v{R_}, v{T}, v{R_+1}")
                    a.e(f"v_fma_f32 v{TT+1}, v{R_}, v{T+1}, v{I_+1}")
                    a.e(f"v_fma_f32 v{D_}, -v{I_}, v{T+1}, v{TT}")
                    a.e(f"v_fma_f32 v{D_+1}, v{I_}, v{T}, v{TT+1}")
                def f2(R_=R_, I_=I_, D_=D_):
                    cfma(D_, D_, T, R_ + 2, I_ + 2, TT)
                def f3(R_=R_, I_=I_, D_=D_):
                    cfma(D_, D_, T, R_ + 3, I_ + 3, TT)
                items += [f1, f2, f3]
            def f4():
                cfma(AC, AC, T + 4, G, G + 1, TT)
            def f5():
                a.e(f"v_mul_f32 v{TT}, v{AC}, v{T+2}")
                a.e(f"v_mul_f32 v{TT+1}, v{AC}, v{T+3}")
                a.e(f"v_fma_f32 v{G}, -v{AC+1}, v{T+3}, v{TT}")
                a.e(f"v_fma_f32 v{G+1}, v{AC+1}, v{T+2}, v{TT+1}")
                a.e(f"v_mov_b32 v{TT}, v{G}")
                a.e(f"v_mov_b32 v{TT+1}, v{G+1}")
                a.e("s_nop 1")
                a.e(f"v_permlane32_swap_b32 v{G}, v{TT}")
                a.e(f"v_permlane32_swap_b32 v{G+1}, v{TT+1}")
            def f6():
                a.e(f"v_add_f32 v{G}, v{G}, v{TT}")
                a.e(f"v_add_f32 v{G+1}, v{G+1}, v{TT+1}")
                a.e(f"v_mov_b32 v{TT}, v{G}")
                a.e(f"v_mov_b32 v{TT+1}, v{G+1}")
                a.e("s_nop 1")
                a.e(f"v_permlane16_swap_b32 v{G}, v{TT}")
                a.e(f"v_permlane16_swap_b32 v{G+1}, v{TT+1}")
            def f7(kt=kt):
                a.e(f"v_add_f32 v{G}, v{G}, v{TT}")
                a.e(f"v_add_f32 v{G+1}, v{G+1}, v{TT+1}")
                a.e(f"s_add_u32 s{S_T2}, s{S_CU0}, {ui}")
                a.e(f"s_lshl_b32 s{S_T2}, s{S_T2}, 7")
                a.e(f"s_add_u32 s{S_T2}, s{S_T2}, {E32_OFF + kt*4096}")
                a.vm(f"buffer_store_dwordx2 v[{G}:{G+1}], v{V_EO}, s[{SRD_O}:{SRD_O+3}], s{S_T2} offen", 'st')
            items += [f4, f5, f6, f7]
        return items
    def phase_epilogue_items(pi):
        kind, wd, u0, ab = phases[pi]
        items = []
        order = list(range(wd))
        if kind == 'S': order = order[::-1]
        for u in order:
            items += kv_unit_items(kind, ab, u, u0 + u) if kind != 'S' else s_unit_items(ab, u, u0 + u)
        return items

    ops = []; frags = []
    for pi, (kind, wd, u0, ab) in enumerate(phases):
        for s in range(16):
            for u in range(wd):
                for t in range(2):
                    fid = len(frags); frags.append((pi, s, u, t))
                    for mt in range(4):
                        ops.append((pi, s, u, t, mt, fid))
    slot_of = {}
    for n, key in enumerate(slots): slot_of[key] = n
    def frag_loc(fid):
        pi, s, u, t = frags[fid]
        kind, wd, u0, ab = phases[pi]
        kb = s >> 1; up = s & 1
        per = 4 // wd
        return slot_of[(pi, kb // per)], (kb % per) * wd + u, up, t, kind
    def issue_frag(fid):
        n, piece, up, t, kind = frag_loc(fid)
        r = FR0 + (fid % NF) * 4
        base = (n % R) * 16384 + piece * 4096
        hi = base >> 16; base &= 0xffff
        if kind == 'S':
            a.ds(f"ds_read_b128 v[{r}:{r+3}], v{V_SR[hi][t][up]} offset:{base}", ('f', fid))
        else:
            a.ds(f"ds_read_b64_tr_b16 v[{r}:{r+1}], v{V_TR[hi][t]} offset:{base + up*2048}", ('f', fid))
            a.ds(f"ds_read_b64_tr_b16 v[{r+2}:{r+3}], v{V_TR[hi][t]} offset:{base + up*2048 + 256}", ('f', fid))

    a_read(0, 'A')
    a.wait(vm=('dma', 0))
    a.e("s_barrier")
    a.wait(lg=('Ar', 0))
    a_dma(2, SRD_A, 'A')
    landed = 0; fnext = 0; last_use_issued = -1; cur_slot = -1
    side = []
    pend_b = None
    credit = 0.0
    for oi, (pi, s, u, t, mt, fid) in enumerate(ops):
        kind, wd, u0, ab = phases[pi]
        n = frag_loc(fid)[0]
        if n != cur_slot:
            cur_slot = n
            stamp()
            if n + 1 < NS:
                a.wait(vm=('dma', n + 1))
            a.e("s_barrier")
            landed = n + 1
            if isS and n == 9:
                setup_kv_regs(106, 107, 108)
            slot_first = oi
        if s == 0 and u == 0 and t == 0 and mt == 0 and pi > 0:
            assert not side, "side work left over"
            side[:] = [None, None, None] + phase_epilogue_items(pi - 1)
        def can_issue(f):
            return f < len(frags) and (f - NF) <= last_use_issued and frag_loc(f)[0] <= landed
        if oi == 0:
            while can_issue(fnext) and fnext < NF:
                issue_frag(fnext); fnext += 1
        if mt == 0:
            a.wait(lg=('f', fid))
        if u == 0 and t == 0 and mt == 0:
            if pi == 0: a.wait(lg=('Ar', s >> 1))
            elif isS and pi == 3: a.wait(lg=('Br', s >> 1))
        acc = acc_of(ab, u, t, mt)
        D = vr(acc, 4)
        C = "0" if s == 0 else D
        fr = vr(FR0 + (fid % NF) * 4, 4)
        af = ar((s * 4 + mt) * 4, 4)
        a.e(m16(D, fr, af, C) if kind == 'K' else m16(D, af, fr, C))
        if mt == 3:
            last_use_issued = fid
        if mt in (1, 3) and can_issue(fnext):
            issue_frag(fnext); fnext += 1
        rel = oi - slot_first
        if rel in (2, 34) and dma_next < NS and dma_next <= n + R - 1:
            issue_dma(dma_next); dma_next += 1
        if pi == 0 and rel == 24 and n + 1 < 8:
            a_read(n + 1, 'A')
        if pi == 0 and rel == 44 and n + 3 < 8:
            a.wait(lg=('Ar', n + 1))
            a_dma(n + 3, SRD_A, 'A')
        if isS and pi == 1 and rel == 10 and n in (8, 9):
            a_dma(n - 8, SRD_A2, 'B')
        if isS and pi == 2 and (s & 1) and u == wd - 1 and t == 1 and mt == 3:
            a_read(s >> 1, 'B')
            pend_b = (s >> 1, oi + 8)
        if pend_b and oi == pend_b[1]:
            if pend_b[0] + 2 < 8:
                a.wait(lg=('Br', pend_b[0]))
                a_dma(pend_b[0] + 2, SRD_A2, 'B')
            pend_b = None
        if side:
            rem_ops = sum(1 for o in ops[oi + 1:] if o[0] == pi) - 12
            k = 0
            if isS and pi == 1 and n == 8:
                k = 1 if (len(side) > 3 * 23 and (oi & 1)) else 0
            else:
                credit += len(side) / max(rem_ops, 1)
                k = int(credit); credit -= k
                if rem_ops <= 0: k = len(side)
            for _ in range(k):
                if side:
                    it = side.pop(0)
                    if it: it()
    assert not side
    a.e("s_nop 15")
    for it in phase_epilogue_items(len(phases) - 1):
        if it: it()
    stamp_end()
    a.e("s_endpgm")

def gen_k1():
    a = Asm()
    a.e("s_cmp_ge_u32 s2, 256")
    a.e("s_cbranch_scc1 K1_exit")
    a.e("s_load_dwordx16 s[16:31], s[0:1], 0")
    a.e("s_load_dwordx16 s[32:47], s[0:1], 64")
    a.e("s_load_dwordx4 s[48:51], s[0:1], 128")
    a.e(f"v_lshrrev_b32 v1, 6, v0")
    a.e("s_nop 0")
    a.e(f"v_readfirstlane_b32 s{S_WAVE}, v1")
    a.e(f"s_lshr_b32 s{S_MB}, s2, 5")
    a.e(f"s_and_b32 s{S_U}, s2, 31")
    a.e(f"s_bfe_u32 s{S_ROT}, s2, 0x30003")
    a.e("s_waitcnt lgkmcnt(0)")
    a.e(f"s_cmp_lt_u32 s{S_U}, 14")
    a.e("s_cbranch_scc1 K1_K9")
    a.e(f"s_cmp_lt_u32 s{S_U}, 28")
    a.e("s_cbranch_scc1 K1_V9")
    a.e(f"s_cmp_lt_u32 s{S_U}, 30")
    a.e("s_cbranch_scc1 K1_S8K1")
    a.e("s_branch K1_S8V1")
    a.label("K1_exit")
    a.e("s_endpgm")
    for typ in ["K9", "V9", "S8K1", "S8V1"]:
        a.label(f"K1_{typ}")
        a.vmq = []; a.lgq = []
        gen_type(a, typ)
    return kernel_wrap("k1_kernel", a.text(), 512, 256)
```

```python
from common import *
import struct, math
def f2u(x):
    return "0x%08x" % struct.unpack("<I", struct.pack("<f", x))[0]

P = dict(A_x=16, ckv=18, wq=20, wuk=22, wuv=24, wo=26, Bx=28, Lre=30, Lim=32, Bre=34, Bim=36, Cre=38, Cim=40,
         logdt=42, Dskip=44, out=46, dbg=48, ws=50)
S_WAVE, S_H, S_I = 3, 4, 5
S_T0, S_T1, S_T2, S_T3 = 6, 7, 8, 9
S_GRP, S_WQ, S_J, S_SW, S_ROW0, S_FIRST = 10, 11, 12, 13, 14, 15
SRD_X, SRD_WQ, SRD_KV, SRD_O, SRD_E = 52, 56, 60, 64, 68
S_FIN, S_TJ, S_TJ1, S_TJ2, S_LD, S_KVH, S_NOCHK, S_SKIP = 72, 73, 74, 75, 76, 77, 78, 79
S_M = 80
S_XL, S_XG, S_WB, S_ROWA, S_PAR, S_ROWB = 88, 89, 90, 91, 92, 93
S_THR, S_NEG = 94, 95

O0, S0, P0, Q0, NM0, FR0 = 0, 64, 96, 112, 144, 160
NF = 8
V_RD, V_DMA, V_M, V_L, V_PS0, V_PS1, V_D, V_LANE16, V_COL = 224, 225, 226, 227, 228, 229, 230, 231, 232
TT = 234
V_TRW, V_XQ0, V_XQ1, V_XR = 246, 247, 248, 249
V_WQD = 253
XF0 = 64
WF0 = 192

LDS_QST = 131072
LDS_WR = 98304
CSCALE = (128 ** -0.5) * 1.4426950408889634
THR = 2.0 ** 60
NEGBIG = -1.0e30
DIAG = False
BM_POS = 0
PRIO = False

def gen_k2():
    a = Asm()
    def st_now(idx):
        if not DIAG: return
        a.e("s_memtime s[100:101]")
        a.e("s_waitcnt lgkmcnt(0)")
        a.e(f"v_writelane_b32 v255, s100, {idx}")
    a.e("s_cmp_ge_u32 s2, 256")
    a.e("s_cbranch_scc1 K2_exit")
    a.e("s_load_dwordx16 s[16:31], s[0:1], 0")
    a.e("s_load_dwordx16 s[32:47], s[0:1], 64")
    a.e("s_load_dwordx4 s[48:51], s[0:1], 128")
    a.e("v_lshrrev_b32 v1, 6, v0")
    a.e("v_and_b32 v233, 63, v0")
    a.e(f"v_readfirstlane_b32 s{S_WAVE}, v1")
    a.e(f"s_and_b32 s{S_H}, s2, 31")
    a.e(f"s_lshr_b32 s{S_I}, s2, 5")
    a.e(f"s_lshr_b32 s{S_GRP}, s{S_WAVE}, 2")
    a.e(f"s_and_b32 s{S_WQ}, s{S_WAVE}, 3")
    a.e(f"v_lshlrev_b32 v{V_LANE16}, 4, v233")
    a.e("s_waitcnt lgkmcnt(0)")
    st_now(0)
    if DIAG:
        a.e("s_memrealtime s[100:101]")
        a.e("s_waitcnt lgkmcnt(0)")
        a.e("v_writelane_b32 v255, s100, 60")
    srd(a, SRD_O, P['ws'], P['ws'] + 1, 64 << 20)
    srd_off(a, SRD_E, P['ws'], P['ws'] + 1, E32_OFF, 64 * 4096)

    srd(a, SRD_X, P['A_x'], P['A_x'] + 1, 2048 * 512 * 2)
    srd(a, SRD_WQ, P['wq'], P['wq'] + 1, 512 * 4096 * 2)
    srd(a, SRD_KV, P['ws'], P['ws'] + 1, 32 << 20)
    a.e(f"s_sub_u32 s{S_T0}, 15, s{S_I}")
    a.e(f"s_lshl_b32 s{S_T0}, s{S_T0}, 7")
    a.e(f"s_lshl_b32 s{S_T1}, s{S_WQ}, 5")
    a.e(f"s_add_u32 s{S_ROWA}, s{S_T0}, s{S_T1}")
    a.e(f"s_lshl_b32 s{S_T0}, s{S_I}, 7")
    a.e(f"s_add_u32 s{S_ROWB}, s{S_T0}, s{S_T1}")
    a.e(f"s_lshl_b32 s{S_T0}, s{S_I}, 1")
    a.e(f"s_add_u32 s{S_T1}, s{S_T0}, 1")
    a.e(f"s_cmp_eq_u32 s{S_GRP}, 0")
    a.e(f"s_cselect_b32 s{S_ROW0}, s{S_ROWA}, s{S_ROWB}")
    a.e(f"s_cselect_b32 s{S_SW}, 99, s{S_T1}")
    a.e(f"s_sub_u32 s{S_SKIP}, 15, s{S_T0}")
    a.e(f"s_lshl_b32 s{S_XL}, s{S_WAVE}, 13")
    a.e(f"s_cmp_lt_u32 s{S_WAVE}, 6")
    a.e(f"s_mov_b32 s{S_T1}, 32768")
    a.e(f"s_cselect_b32 s{S_T0}, 16384, s{S_T1}")
    a.e(f"s_add_u32 s{S_XL}, s{S_XL}, s{S_T0}")
    a.e(f"s_lshl_b32 s{S_XG}, s{S_ROW0}, 10")
    X = TT; Y = TT + 1; Z = TT + 2
    a.e(f"v_lshrrev_b32 v{X}, 3, v233")
    a.e(f"v_and_b32 v{Y}, 7, v233")
    for q, dst in enumerate([V_XQ0, V_XQ1]):
        a.e(f"v_add_u32 v{Z}, {8*q}, v{X}")
        a.e(f"v_bfe_u32 v{Z+1}, v{Z}, 1, 3")
        a.e(f"v_xor_b32 v{Z+1}, v{Z+1}, v{Y}")
        a.e(f"v_lshlrev_b32 v{Z+1}, 4, v{Z+1}")
        a.e(f"v_lshl_add_u32 v{Z+1}, v{Z}, 10, v{Z+1}")
        a.e(f"v_subrev_u32 v{dst}, {1024*q}, v{Z+1}")
    a.e(f"v_and_b32 v{X}, 31, v233")
    a.e(f"v_mov_b32 v{V_COL}, v{X}")
    a.e(f"v_lshlrev_b32 v{Y}, 7, v{X}")
    a.e(f"v_add_u32 v{Y}, s{S_XL}, v{Y}")
    a.e(f"v_bfe_u32 v{Z}, v233, 1, 3")
    a.e(f"v_lshrrev_b32 v{Z+1}, 5, v233")
    a.e(f"v_xor_b32 v{Z}, v{Z}, v{Z+1}")
    a.e(f"v_lshl_add_u32 v{V_XR}, v{Z}, 4, v{Y}")
    for u in range(1, 4):
        a.e(f"v_xor_b32 v{V_XR+u}, {32*u}, v{V_XR}")
    WQD = [V_WQD, V_WQD + 1]
    a.e(f"v_lshrrev_b32 v{X}, 2, v233")
    a.e(f"v_lshlrev_b32 v{WQD[0]}, 13, v{X}")
    a.e(f"v_and_b32 v{X}, 3, v233")
    a.e(f"v_lshl_add_u32 v{WQD[0]}, v{X}, 4, v{WQD[0]}")
    a.e(f"v_add_u32 v{WQD[1]}, {16*8192 - 1024}, v{WQD[0]}")
    a.e(f"s_lshl_b32 s{S_WB}, s{S_H}, 8")
    a.e(f"s_lshr_b32 s{S_T0}, s{S_WAVE}, 1")
    a.e(f"s_lshl_b32 s{S_T0}, s{S_T0}, 6")
    a.e(f"s_add_u32 s{S_WB}, s{S_WB}, s{S_T0}")
    a.e(f"s_and_b32 s{S_T0}, s{S_WAVE}, 1")
    a.e(f"s_lshl_b32 s{S_T0}, s{S_T0}, 18")
    a.e(f"s_add_u32 s{S_WB}, s{S_WB}, s{S_T0}")
    a.e(f"v_lshrrev_b32 v{X}, 5, v233")
    a.e(f"v_lshlrev_b32 v{V_TRW}, 9, v{X}")
    a.e(f"v_bfe_u32 v{X}, v233, 2, 2")
    a.e(f"v_lshl_add_u32 v{V_TRW}, v{X}, 6, v{V_TRW}")
    a.e(f"v_bfe_u32 v{X}, v233, 4, 1")
    a.e(f"v_lshl_add_u32 v{V_TRW}, v{X}, 5, v{V_TRW}")
    a.e(f"v_and_b32 v{X}, 3, v233")
    a.e(f"v_lshl_add_u32 v{V_TRW}, v{X}, 3, v{V_TRW}")
    a.e(f"v_add_u32 v{V_TRW}, {LDS_WR}, v{V_TRW}")
    a.e(f"s_lshl_b32 s{S_T0}, s{S_GRP}, 16")
    a.e(f"s_lshl_b32 s{S_T1}, s{S_WQ}, 12")
    a.e(f"s_add_u32 s{S_LD}, s{S_T0}, s{S_T1}")
    a.e(f"s_lshl_b32 s{S_KVH}, s{S_H}, 19")
    a.e(f"s_add_u32 s{S_KVH}, s{S_KVH}, s{S_T1}")
    a.e(f"v_add_u32 v{V_RD}, s{S_T0}, v{V_LANE16}")
    a.e(f"s_mov_b32 s{S_THR}, {f2u(THR)}")
    a.e(f"s_mov_b32 s{S_NEG}, {f2u(NEGBIG)}")

    def w_dma(n):
        a.e(f"s_lshl_b32 s{S_T0}, s{S_WAVE}, 11")
        a.e(f"s_add_u32 m0, s{S_T0}, {LDS_WR + (n % 3) * 16384}")
        a.e(f"s_add_u32 s{S_T0}, s{S_WB}, {n * 524288}")
        for q in range(2):
            a.vm(f"buffer_load_dwordx4 v{WQD[q]}, s[{SRD_WQ}:{SRD_WQ+3}], s{S_T0} offen offset:{1024*q} lds", ('w', n))
    def x_dma(c):
        for qq in range(2):
            a.e(f"s_add_u32 m0, s{S_XL}, {(c & 1) * 4096 + qq * 2048}")
            a.e(f"s_add_u32 s{S_T0}, s{S_XG}, {c * 128 + qq * 16384}")
            a.vm(f"buffer_load_dwordx4 v{V_XQ0}, s[{SRD_X}:{SRD_X+3}], s{S_T0} offen lds", ('x', c))
            a.vm(f"buffer_load_dwordx4 v{V_XQ1}, s[{SRD_X}:{SRD_X+3}], s{S_T0} offen offset:1024 lds", ('x', c))
    def x_read(c):
        a.wait(vm=('x', c))
        for u in range(4):
            r = XF0 + ((c & 3) * 4 + u) * 4
            a.ds(f"ds_read_b128 v[{r}:{r+3}], v{V_XR+u} offset:{(c & 1) * 4096}", ('xr', c))
    def kv_dma(which, s_tile, buf_expr_off, tag):
        a.e(f"s_lshl_b32 s{S_T0}, s{s_tile}, 14")
        a.e(f"s_add_u32 s{S_T0}, s{S_T0}, s{S_KVH}")
        if which == 'V': a.e(f"s_add_u32 s{S_T0}, s{S_T0}, {VF_OFF}")
        for q in range(4):
            a.vm(f"buffer_load_dwordx4 v{V_LANE16}, s[{SRD_KV}:{SRD_KV+3}], s{S_T0} offen offset:{1024*q} lds", tag)

    SC, SG = 96, 97
    E0 = 128
    B0 = 160
    CL, CL8, CL32, CLS, CCO = 176, 178, 180, 182, 184
    VA, VB_, VSUB, VCH = 186, 187, 188, 189
    S_HS = 98
    def scan_loads():
        a.e(f"s_lshl_b32 s{S_T0}, s2, 3")
        a.e(f"s_add_u32 s{S_T0}, s{S_T0}, s{S_WAVE}")
        a.e(f"s_lshr_b32 s{SC}, s{S_T0}, 5")
        a.e(f"s_and_b32 s{SG}, s{S_T0}, 31")
        a.e(f"v_and_b32 v{VCH}, 15, v233")
        a.e(f"v_lshrrev_b32 v{VSUB}, 4, v233")
        a.e(f"s_lshl_b32 s{S_T0}, s{SG}, 7")
        a.e(f"v_lshlrev_b32 v{VA}, 3, v{VCH}")
        a.e(f"v_add_u32 v{VA}, s{S_T0}, v{VA}")
        a.e(f"s_mov_b32 s{S_T1}, {TAB_OFF}")
        a.vm(f"buffer_load_dwordx2 v[{CL32}:{CL32+1}], v{VA}, s[{SRD_O}:{SRD_O+3}], s{S_T1} offen offset:0", 'x')
        a.lines.pop(); a.vmq.pop()
        a.e(f"s_add_u32 s{S_T0}, s{S_T1}, {2*4096}")
        a.vm(f"buffer_load_dwordx2 v[{CL32}:{CL32+1}], v{VA}, s[{SRD_O}:{SRD_O+3}], s{S_T0} offen", 'sc')
        a.e(f"v_lshlrev_b32 v{VB_}, 16, v{VSUB}")
        a.e(f"v_sub_u32 v{VB_}, v{VA}, v{VB_}")
        a.e(f"s_lshl_b32 s{S_T0}, s{SC}, 12")
        a.e(f"s_sub_u32 s{S_T0}, s{S_T0}, {16*4096}")
        a.e(f"v_add_u32 v{VB_}, s{S_T0}, v{VB_}")
        for i in range(16):
            a.vm(f"buffer_load_dwordx2 v[{E0+2*i}:{E0+2*i+1}], v{VB_}, s[{SRD_E}:{SRD_E+3}], 0 offen", ('e', i))
            if i < 15: a.e(f"v_add_u32 v{VB_}, 0x1000, v{VB_}")
        a.vm(f"buffer_load_dwordx2 v[{CL}:{CL+1}], v{VA}, s[{SRD_O}:{SRD_O+3}], s{S_T1} offen", 'sc2')
        a.e(f"s_add_u32 s{S_T0}, s{S_T1}, 4096")
        a.vm(f"buffer_load_dwordx2 v[{CL8}:{CL8+1}], v{VA}, s[{SRD_O}:{SRD_O+3}], s{S_T0} offen", 'sc2')
        a.e(f"s_add_u32 s{S_T0}, s{S_T1}, {6*4096}")
        a.vm(f"buffer_load_dwordx2 v[{CCO}:{CCO+1}], v{VA}, s[{SRD_O}:{SRD_O+3}], s{S_T0} offen", 'sc2')
        a.e(f"v_lshl_add_u32 v{VB_}, v{VSUB}, 12, v{VA}")
        a.e(f"s_add_u32 s{S_T0}, s{S_T1}, {2*4096}")
        a.vm(f"buffer_load_dwordx2 v[{CLS}:{CLS+1}], v{VB_}, s[{SRD_O}:{SRD_O+3}], s{S_T0} offen", 'sc2')
        a.e(f"s_lshl_b32 s{S_T0}, s{SC}, 17")
        a.e(f"s_lshr_b32 s{S_T1}, s{SG}, 1")
        a.e(f"s_lshl_b32 s{S_T1}, s{S_T1}, 13")
        a.e(f"s_add_u32 s{S_T0}, s{S_T0}, s{S_T1}")
        a.e(f"s_and_b32 s{S_T1}, s{SG}, 1")
        a.e(f"s_lshl_b32 s{S_T1}, s{S_T1}, 8")
        a.e(f"s_add_u32 s{S_T0}, s{S_T0}, s{S_T1}")
        a.e(f"s_add_u32 s{S_T0}, s{S_T0}, {BU_OFF}")
        a.e(f"s_add_u32 s{S_T1}, s{S_T0}, 4096")
        a.e(f"v_lshlrev_b32 v{VB_}, 4, v{VCH}")
        a.e(f"v_lshl_add_u32 v{VB_}, v{VSUB}, 10, v{VB_}")
        for part in range(2):
            for hf in range(2):
                r = B0 + part * 8 + hf * 4
                a.vm(f"buffer_load_dwordx4 v[{r}:{r+3}], v{VB_}, s[{SRD_O}:{SRD_O+3}], s{S_T0 if part == 0 else S_T1} offen offset:{512*hf}", 'bu')
        a.e(f"s_lshl_b32 s{S_HS}, s{SC}, 6")
        a.e(f"s_lshl_b32 s{S_T0}, s{SG}, 1")
        a.e(f"s_add_u32 s{S_HS}, s{S_HS}, s{S_T0}")
        a.e(f"s_lshl_b32 s{S_HS}, s{S_HS}, 10")
        a.e(f"s_add_u32 s{S_HS}, s{S_HS}, {HF_OFF}")


    w_dma(0); x_dma(0)
    a.e("s_barrier")
    x_dma(1); w_dma(1); w_dma(2)
    scan_loads()
    a.e(f"s_mov_b32 s{S_TJ}, 0")

    AC, T0_, T1_ = 190, TT + 4, TT + 6
    scan = []
    def S(f): scan.append(f)
    def cfma(d, x, l, b_re, b_im, t):
        a.e(f"v_fma_f32 v{t}, v{x}, v{l}, v{b_re}")
        a.e(f"v_fma_f32 v{t+1}, v{x}, v{l+1}, v{b_im}")
        a.e(f"v_fma_f32 v{d}, -v{x+1}, v{l+1}, v{t}")
        a.e(f"v_fma_f32 v{d+1}, v{x+1}, v{l}, v{t+1}")
    def cmul(d, x, l, t):
        a.e(f"v_mul_f32 v{t}, v{x}, v{l}")
        a.e(f"v_mul_f32 v{t+1}, v{x}, v{l+1}")
        a.e(f"v_fma_f32 v{d}, -v{x+1}, v{l+1}, v{t}")
        a.e(f"v_fma_f32 v{d+1}, v{x+1}, v{l}, v{t+1}")
    def f():
        a.e(f"v_cmp_lt_u32 s[{S_M}:{S_M+1}], 0, v{VSUB}")
        a.e(f"v_cmp_lt_u32 s[{S_M+2}:{S_M+3}], 1, v{VSUB}")
        a.e(f"v_cmp_lt_u32 s[{S_M+4}:{S_M+5}], 2, v{VSUB}")
        a.wait(vm='bu')
    S(f)
    S(lambda: cfma(AC, E0, CL32, E0 + 2, E0 + 3, T0_))
    for i in range(2, 16):
        S(lambda i=i: cfma(AC, AC, CL32, E0 + 2 * i, E0 + 2 * i + 1, T0_))
    def f():
        a.e(f"v_cndmask_b32 v{CLS}, 1.0, v{CLS}, s[{S_M}:{S_M+1}]")
        a.e(f"v_cndmask_b32 v{CLS+1}, 0, v{CLS+1}, s[{S_M}:{S_M+1}]")
    S(f)
    S(lambda: cmul(AC, AC, CLS, T0_))
    for sw in ("v_permlane32_swap_b32", "v_permlane16_swap_b32"):
        def f(sw=sw):
            a.e(f"v_mov_b32 v{T0_}, v{AC}")
            a.e(f"v_mov_b32 v{T0_+1}, v{AC+1}")
            a.e("s_nop 1")
            a.e(f"{sw} v{AC}, v{T0_}")
            a.e(f"{sw} v{AC+1}, v{T0_+1}")
        S(f)
        def f():
            a.e(f"v_add_f32 v{AC}, v{AC}, v{T0_}")
            a.e(f"v_add_f32 v{AC+1}, v{AC+1}, v{T0_+1}")
        S(f)
    def bu(k, part): return B0 + part * 8 + k
    EN = E0
    def f():
        a.e(f"v_fma_f32 v{T0_}, v{bu(0,0)}, v{CL}, v{bu(1,0)}")
        a.e(f"v_fma_f32 v{T0_+1}, v{bu(0,0)}, v{CL+1}, v{bu(1,1)}")
        a.e(f"v_fma_f32 v{EN}, -v{bu(0,1)}, v{CL+1}, v{T0_}")
        a.e(f"v_fma_f32 v{EN+1}, v{bu(0,1)}, v{CL}, v{T0_+1}")
    S(f)
    for k in range(2, 8):
        S(lambda k=k: cfma(EN, EN, CL, bu(k, 0), bu(k, 1), T0_))
    def f():
        a.e(f"v_lshlrev_b32 v{VA}, 2, v{VCH}")
        for jp in range(3):
            if jp: a.e(f"v_add_u32 v{VA}, 64, v{VA}")
            a.ds(f"ds_bpermute_b32 v{EN+2+2*jp}, v{VA}, v{EN}", 'bp')
            a.ds(f"ds_bpermute_b32 v{EN+3+2*jp}, v{VA}, v{EN+1}", 'bp')
    S(f)
    def f():
        a.e(f"v_bfe_u32 v{VB_}, v{VCH}, 2, 1")
        a.e(f"v_lshlrev_b32 v{VB_}, 10, v{VB_}")
        a.e(f"v_bfe_u32 v{T1_}, v{VCH}, 3, 1")
        a.e(f"v_lshl_add_u32 v{VB_}, v{T1_}, 9, v{VB_}")
    S(f)
    def f():
        a.e(f"v_and_b32 v{T1_}, 3, v{VCH}")
        a.e(f"v_lshl_add_u32 v{VB_}, v{T1_}, 2, v{VB_}")
        a.e(f"v_lshl_add_u32 v{VB_}, v{VSUB}, 7, v{VB_}")
    S(f)
    for jp in range(3):
        def f(jp=jp):
            a.wait(lg='bp')
            cfma(T1_, AC, CL8, EN + 2 + 2 * jp, EN + 3 + 2 * jp, T0_)
        S(f)
        def f(jp=jp):
            a.e(f"v_cndmask_b32 v{AC}, v{AC}, v{T1_}, s[{S_M+2*jp}:{S_M+2*jp+1}]")
            a.e(f"v_cndmask_b32 v{AC+1}, v{AC+1}, v{T1_+1}, s[{S_M+2*jp}:{S_M+2*jp+1}]")
        S(f)
    for k in range(8):
        S(lambda k=k: cfma(AC, AC, CL, bu(k, 0), bu(k, 1), T0_))
        S(lambda k=k: cmul(EN + 8 + 2 * (k & 3), AC, CCO, T0_))
        def f(k=k):
            h = EN + 8 + 2 * (k & 3)
            a.e(f"v_cvt_pk_bf16_f32 v{EN+16+k}, v{h}, -v{h+1}")
            a.vm(f"buffer_store_dword v{EN+16+k}, v{VB_}, s[{SRD_O}:{SRD_O+3}], s{S_HS} offen offset:{16*k}", 'hs')
        S(f)

    st_now(1)
    x_read(0)
    a.wait(lg=('xr', 0)); x_dma(2)
    x_read(1)
    a.wait(lg=('xr', 1)); x_dma(3)
    wfr = []
    for n in range(8):
        for u in range(4):
            for un in range(4):
                wfr.append((n, u, un))
    def w_issue(f):
        n, u, un = wfr[f]
        r = WF0 + (f % NF) * 4
        off = (n % 3) * 16384 + un * 4096 + u * 1024
        a.ds(f"ds_read_b64_tr_b16 v[{r}:{r+1}], v{V_TRW} offset:{off}", ('wf', f))
        a.ds(f"ds_read_b64_tr_b16 v[{r+2}:{r+3}], v{V_TRW} offset:{off+256}", ('wf', f))
    a.wait(vm=('w', 0))
    a.e("s_barrier")
    fn = 0; landed = 0
    for f, (n, u, un) in enumerate(wfr):
        if u == 0 and un == 0:
            if DIAG: st_now(48 + n); a.lgq = []
            if n + 1 < 8: a.wait(vm=('w', n + 1))
            a.e("s_barrier")
            landed = n + 1
            if n >= 1 and n + 2 < 8: w_dma(n + 2)
            if f == 0:
                while fn < NF: w_issue(fn); fn += 1
        a.wait(lg=('wf', f))
        if un == 0: a.wait(lg=('xr', n))
        D = vr(O0 + un * 16, 16)
        a.e(mfma(D, vr(WF0 + (f % NF) * 4, 4), vr(XF0 + ((n & 3) * 4 + u) * 4, 4), "0" if (n == 0 and u == 0) else D))
        if fn < len(wfr) and fn - NF <= f and wfr[fn][0] <= landed:
            w_issue(fn); fn += 1
        if u == 1 and un == 1 and n + 2 < 8:
            x_read(n + 2)
        if u == 2 and un == 2 and n + 4 < 8:
            a.wait(lg=('xr', n + 2)); x_dma(n + 4)
        if f == 52:
            a.e(f"s_mov_b32 m0, s{S_LD}")
            kv_dma('K', S_TJ, 0, 'k0')
        if f >= 40 and scan:
            scan.pop(0)()
    assert not scan, len(scan)
    a.wait(vm='k0')
    a.e("s_barrier")
    st_now(2)
    if DIAG:
        a.e("s_memrealtime s[100:101]")
        a.e("s_waitcnt lgkmcnt(0)")
        a.e("v_writelane_b32 v255, s100, 61")
    if DIAG: a.e("s_mov_b32 s100, 4"); a.e("s_mov_b32 s98, 0")
    a.e(f"s_mov_b32 s{S_TJ1}, 1")
    a.e(f"s_add_u32 m0, s{S_LD}, 32768")
    kv_dma('K', S_TJ1, 0, 'st')
    a.e(f"s_add_u32 m0, s{S_LD}, {32768 + 16384}")
    kv_dma('V', S_TJ, 0, 'st')
    a.e(f"s_mov_b32 s{S_T1}, {f2u(CSCALE)}")
    for r in range(64):
        a.e(f"v_mul_f32 v{O0+r}, s{S_T1}, v{O0+r}")
    for Pt in range(4):
        for b in range(2):
            q = Q0 + (2 * Pt + b) * 4
            for k, rr in enumerate([4 * b, 4 * b + 2, 8 + 4 * b, 8 + 4 * b + 2]):
                a.e(f"v_cvt_pk_bf16_f32 v{q+k}, v{O0+Pt*16+rr}, v{O0+Pt*16+rr+1}")
    for r in range(64): a.e(f"v_mov_b32 v{O0+r}, 0")
    for r in range(16): a.e(f"v_mov_b32 v{NM0+r}, 0")
    a.e(f"v_mov_b32 v{V_M}, 0")
    a.e(f"v_mov_b32 v{V_L}, 0")
    a.e(f"s_mov_b32 s{S_J}, 0")
    a.e(f"s_mov_b32 s{S_FIRST}, 1")
    a.e(f"s_mov_b32 s{S_FIN}, 0")
    a.e(f"s_mov_b32 s{S_PAR}, 0")
    a.e(f"s_mov_b32 s{S_NOCHK}, 0")
    a.e(f"s_add_u32 s{S_T0}, s{S_SKIP}, 2")
    a.e(f"s_cmp_lt_u32 s{S_SW}, 2")
    a.e(f"s_cselect_b32 s{S_TJ2}, s{S_T0}, 2")
    a.e(f"s_lshl_b32 s{S_T0}, s{S_WQ}, 13")
    a.e(f"s_add_u32 s{S_T0}, s{S_T0}, {LDS_QST}")
    a.e(f"v_add_u32 v{V_XR}, s{S_T0}, v{V_LANE16}")
    a.e(f"v_lshrrev_b32 v{TT}, 9, v{V_LANE16}")
    a.e(f"v_lshlrev_b32 v{TT}, 2, v{TT}")
    a.e(f"v_sub_u32 v{V_COL}, v{V_COL}, v{TT}")
    a.e(f"s_cmp_eq_u32 s{S_GRP}, 0")
    a.e("s_cbranch_scc0 K2_qk0")
    for k in range(8):
        a.e(f"ds_write_b128 v{V_XR}, v[{Q0+4*k}:{Q0+4*k+3}] offset:{1024*k}")
    a.e("s_waitcnt lgkmcnt(0)")
    a.e("s_barrier")
    a.label("K2_qk0")
    a.lgq = []

    def frag_list(qk, pv):
        fl = []
        if qk: fl += [('K', kt, ds) for kt in range(2) for ds in range(8)]
        if pv: fl += [('V', ks, dt) for ks in range(4) for dt in range(4)]
        return fl
    def f_issue(fl, i):
        kind, x, y = fl[i]
        r = FR0 + (i % NF) * 4
        off = (x * 8 + y) * 1024 if kind == 'K' else 16384 + (x * 4 + y) * 1024
        a.ds(f"ds_read_b128 v[{r}:{r+3}], v{V_RD} offset:{off}", ('f', i))
    def m_phase(fl, bar_after):
        for i, (kind, x, y) in enumerate(fl):
            if i == bar_after:
                a.e("s_barrier")
                if DIAG: a.e("s_memtime s[98:99]")
            a.wait(lg=('f', i))
            fr = vr(FR0 + (i % NF) * 4, 4)
            if kind == 'K':
                D = vr(S0 + x * 16, 16)
                a.e(mfma(D, fr, vr(Q0 + y * 4, 4), vr(NM0, 16) if y == 0 else D))
            else:
                D = vr(O0 + y * 16, 16)
                a.e(mfma(D, fr, vr(P0 + x * 4, 4), D))
            if i + NF < len(fl): f_issue(fl, i + NF)

    fl = frag_list(True, False)
    for i in range(NF): f_issue(fl, i)
    m_phase(fl, -1)

    def store_ctx(srow, tag):
        a.e(f"s_lshl_b32 s{S_T0}, s{srow}, 13")
        a.e(f"s_lshl_b32 s{S_T1}, s{S_H}, 13")
        a.e(f"s_add_u32 s{S_T0}, s{S_T0}, s{S_T1}")
        a.e(f"s_add_u32 s{S_T0}, s{S_T0}, {CTX_OFF}")
        a.e(f"s_add_u32 s{S_T1}, s{S_T0}, 4096")
        for f in range(8):
            t = P0 + (f % 4) * 4
            for k in range(4):
                a.e(f"v_cvt_pk_bf16_f32 v{t+k}, v{O0+f*8+2*k}, v{O0+f*8+2*k+1}")
            a.e(f"buffer_store_dwordx4 v[{t}:{t+3}], v{V_LANE16}, s[{SRD_O}:{SRD_O+3}], s{S_T0 if f < 4 else S_T1} offen offset:{1024*(f%4)}")

    def body(last):
        sfx = "Z" if last else "A"
        if not last: a.label("K2_loop")
        a.e("s_waitcnt vmcnt(0)")
        a.e("s_barrier")
        if DIAG:
            a.e("s_memtime s[96:97]")
            a.e("s_waitcnt lgkmcnt(0)")
            a.e("s_sub_u32 m0, s100, 1")
            a.e("v_writelane_b32 v255, s98, m0")
            a.e("s_mov_b32 m0, s100")
            a.e("v_writelane_b32 v255, s96, m0")
            a.e("s_add_u32 s100, s100, 2")
            a.e(f"s_add_u32 m0, s{S_J}, 39")
            a.e("s_min_u32 m0, m0, 47")
            a.e("v_writelane_b32 v255, s86, m0")
        if PRIO: a.e("s_setprio 1")
        a.e(f"v_xor_b32 v{V_RD}, 0x8000, v{V_RD}")
        if not last:
            a.e(f"s_lshl_b32 s{S_T2}, s{S_TJ2}, 14")
            a.e(f"s_add_u32 s{S_T2}, s{S_T2}, s{S_KVH}")
            a.e(f"s_lshl_b32 s{S_T3}, s{S_TJ1}, 14")
            a.e(f"s_add_u32 s{S_T3}, s{S_T3}, s{S_KVH}")
            a.e(f"s_add_u32 s{S_T3}, s{S_T3}, {VF_OFF}")
            a.e(f"s_add_u32 s{S_XG}, s{S_LD}, s{S_PAR}")
        a.e(f"s_cmp_lg_u32 s{S_FIN}, 0")
        a.e(f"s_cbranch_scc1 K2_fin{sfx}")
        a.label(f"K2_finret{sfx}")
        a.e(f"s_lshl_b32 s{S_T0}, s{S_TJ}, 6")
        a.e(f"s_add_u32 s{S_T1}, s{S_T0}, 63")
        a.e(f"s_cmp_gt_u32 s{S_T1}, s{S_ROW0}")
        a.e(f"s_cbranch_scc1 K2_mask{sfx}")
        a.label(f"K2_maskret{sfx}")
        a.e(f"s_cmp_lg_u32 s{S_FIRST}, 0")
        a.e(f"s_cbranch_scc1 K2_slow{sfx}")
        a.label(f"K2_exp{sfx}")
        pairs = []
        for kt in range(2):
            for b in range(2):
                for k, rr in enumerate([4 * b, 4 * b + 2, 8 + 4 * b, 8 + 4 * b + 2]):
                    pairs.append((S0 + kt * 16 + rr, P0 + (2 * kt + b) * 4 + k))
        def consume(n):
            t = TT + 2 * (n % 4)
            if n == 0:
                a.e(f"v_mov_b32 v{V_PS0}, v{t}")
                a.e(f"v_mov_b32 v{V_PS1}, v{t+1}")
            else:
                a.e(f"v_add_f32 v{V_PS0}, v{V_PS0}, v{t}")
                a.e(f"v_add_f32 v{V_PS1}, v{V_PS1}, v{t+1}")
            a.e(f"v_cvt_pk_bf16_f32 v{pairs[n][1]}, v{t}, v{t+1}")
        for n, (sa, pd) in enumerate(pairs):
            t = TT + 2 * (n % 4)
            if not last and n in (0, 8):
                a.e(f"s_add_u32 m0, s{S_XG}, {0 if n == 0 else 16384}")
                a.e("s_nop 0")
                a.e(f"buffer_load_dwordx4 v{V_LANE16}, s[{SRD_KV}:{SRD_KV+3}], s{S_T2 if n == 0 else S_T3} offen lds")
            a.e(f"v_exp_f32 v{t}, v{sa}")
            a.e(f"v_exp_f32 v{t+1}, v{sa+1}")
            if n >= 2: consume(n - 2)
            if not last and (n % 8) in (1, 3, 5):
                a.e(f"buffer_load_dwordx4 v{V_LANE16}, s[{SRD_KV}:{SRD_KV+3}], s{S_T2 if n < 8 else S_T3} offen offset:{1024*((n % 8 + 1)//2)} lds")
        consume(14)
        consume(15)
        a.e(f"v_add_f32 v{V_PS0}, v{V_PS0}, v{V_PS1}")
        a.e(f"v_cmp_ngt_f32 vcc, s{S_THR}, v{V_PS0}")
        a.e(f"s_cbranch_vccnz K2_chk{sfx}")
        a.label(f"K2_ok{sfx}")
        if DIAG: a.e("s_memtime s[86:87]")
        a.e(f"v_add_f32 v{V_L}, v{V_L}, v{V_PS0}")
        a.e(f"s_mov_b32 s{S_NOCHK}, 0")
        if not last:
            a.e(f"s_cmp_eq_u32 s{S_J}, s{S_SW}")
            a.e(f"s_cbranch_scc1 K2_sw{sfx}")
            a.label(f"K2_swret{sfx}")
        fl = frag_list(not last, True)
        a.lgq = []
        for i in range(NF): f_issue(fl, i)
        if PRIO: a.e("s_setprio 0")
        m_phase(fl, BM_POS if not last else 0)
        if not last:
            a.e(f"s_mov_b32 s{S_TJ}, s{S_TJ1}")
            a.e(f"s_mov_b32 s{S_TJ1}, s{S_TJ2}")
            a.e(f"s_add_u32 s{S_T0}, s{S_J}, 3")
            a.e(f"s_add_u32 s{S_T1}, s{S_T0}, s{S_SKIP}")
            a.e(f"s_cmp_gt_u32 s{S_T0}, s{S_SW}")
            a.e(f"s_cselect_b32 s{S_TJ2}, s{S_T1}, s{S_T0}")
            a.e(f"s_min_u32 s{S_TJ2}, s{S_TJ2}, 31")
            a.e(f"s_xor_b32 s{S_PAR}, s{S_PAR}, 0x8000")
            a.e(f"s_add_u32 s{S_J}, s{S_J}, 1")
            a.e(f"s_cmp_lt_u32 s{S_J}, 16")
            a.e("s_cbranch_scc1 K2_loop")

    def outofline(last):
        sfx = "Z" if last else "A"
        a.label(f"K2_fin{sfx}")
        a.e(f"v_mov_b32 v{TT}, v{V_L}")
        a.e("s_nop 1")
        a.e(f"v_permlane32_swap_b32 v{V_L}, v{TT}")
        a.e("s_nop 1")
        a.e(f"v_add_f32 v{TT}, v{V_L}, v{TT}")
        a.e(f"v_rcp_f32 v{TT}, v{TT}")
        a.e(f"v_mov_b32 v{V_L}, 0")
        a.e(f"s_mov_b32 s{S_FIN}, 0")
        for r in range(64): a.e(f"v_mul_f32 v{O0+r}, v{O0+r}, v{TT}")
        store_ctx(S_ROWB, 'c')
        for r in range(64): a.e(f"v_mov_b32 v{O0+r}, 0")
        a.e(f"s_branch K2_finret{sfx}")
        a.label(f"K2_mask{sfx}")
        a.e(f"s_sub_u32 s{S_T1}, s{S_ROW0}, s{S_T0}")
        a.e(f"v_add_u32 v{V_D}, s{S_T1}, v{V_COL}")
        a.e(f"v_mov_b32 v{TT+11}, s{S_NEG}")
        for g in range(8):
            regs = [(g >> 2) * 16 + (g & 3) * 4 + k for k in range(4)]
            for k, r in enumerate(regs):
                c = 32 * (r >> 4) + 8 * ((r & 15) >> 2) + (r & 3)
                a.e(f"v_cmp_le_i32 s[{S_M+2*k}:{S_M+2*k+1}], {c}, v{V_D}")
            for k, r in enumerate(regs):
                a.e(f"v_cndmask_b32 v{S0+r}, v{TT+11}, v{S0+r}, s[{S_M+2*k}:{S_M+2*k+1}]")
        a.e(f"s_branch K2_maskret{sfx}")
        a.label(f"K2_chk{sfx}")
        a.e(f"s_cmp_lg_u32 s{S_NOCHK}, 0")
        a.e(f"s_cbranch_scc1 K2_ok{sfx}")
        a.label(f"K2_slow{sfx}")
        a.e(f"v_max3_f32 v{TT}, v{S0}, v{S0+1}, v{S0+2}")
        a.e(f"v_max3_f32 v{TT+1}, v{S0+3}, v{S0+4}, v{S0+5}")
        for r in range(6, 30, 4):
            a.e(f"v_max3_f32 v{TT}, v{TT}, v{S0+r}, v{S0+r+1}")
            a.e(f"v_max3_f32 v{TT+1}, v{TT+1}, v{S0+r+2}, v{S0+r+3}")
        a.e(f"v_max3_f32 v{TT}, v{TT}, v{S0+30}, v{S0+31}")
        a.e(f"v_max_f32 v{TT}, v{TT}, v{TT+1}")
        a.e(f"v_mov_b32 v{TT+1}, v{TT}")
        a.e("s_nop 1")
        a.e(f"v_permlane32_swap_b32 v{TT}, v{TT+1}")
        a.e("s_nop 1")
        a.e(f"v_max_f32 v{TT}, v{TT}, v{TT+1}")
        a.e(f"s_cmp_lg_u32 s{S_FIRST}, 0")
        a.e(f"s_cbranch_scc1 K2_slowf{sfx}")
        a.e(f"v_max_f32 v{TT}, 0, v{TT}")
        a.e(f"v_exp_f32 v{TT+1}, -v{TT}")
        a.e("s_nop 0")
        a.e(f"v_mul_f32 v{V_L}, v{V_L}, v{TT+1}")
        for r in range(64): a.e(f"v_mul_f32 v{O0+r}, v{O0+r}, v{TT+1}")
        a.e(f"s_branch K2_slowc{sfx}")
        a.label(f"K2_slowf{sfx}")
        a.e(f"v_max_f32 v{TT}, {f2u(-1.0e20)}, v{TT}")
        a.label(f"K2_slowc{sfx}")
        a.e(f"v_add_f32 v{V_M}, v{V_M}, v{TT}")
        a.e(f"v_sub_f32 v{NM0}, 0, v{V_M}")
        for r in range(1, 16): a.e(f"v_mov_b32 v{NM0+r}, v{NM0}")
        for r in range(32): a.e(f"v_sub_f32 v{S0+r}, v{S0+r}, v{TT}")
        a.e(f"s_mov_b32 s{S_FIRST}, 0")
        a.e(f"s_mov_b32 s{S_NOCHK}, 1")
        a.e(f"s_branch K2_exp{sfx}")
        if not last:
            a.label(f"K2_sw{sfx}")
            for k in range(8):
                a.e(f"ds_read_b128 v[{Q0+4*k}:{Q0+4*k+3}], v{V_XR} offset:{1024*k}")
            for r in range(16): a.e(f"v_mov_b32 v{NM0+r}, 0")
            a.e(f"v_mov_b32 v{V_M}, 0")
            a.e(f"s_mov_b32 s{S_FIRST}, 1")
            a.e(f"s_mov_b32 s{S_FIN}, 1")
            a.e(f"s_mov_b32 s{S_ROW0}, s{S_ROWA}")
            a.e("s_waitcnt lgkmcnt(0)")
            a.e(f"s_branch K2_swret{sfx}")

    body(False)
    body(True)
    a.e(f"s_lshl_b32 s{S_T0}, s{S_WQ}, 14")
    a.e(f"s_add_u32 s{S_T0}, s{S_T0}, 65536")
    a.e(f"v_add_u32 v{TT+2}, s{S_T0}, v{V_LANE16}")
    a.e(f"s_lshl_b32 s{S_T0}, s{S_WQ}, 9")
    a.e(f"s_add_u32 s{S_T0}, s{S_T0}, {LDS_QST}")
    a.e(f"v_lshrrev_b32 v{TT+3}, 1, v{V_LANE16}")
    a.e(f"v_add_u32 v{TT+3}, s{S_T0}, v{TT+3}")
    a.e("s_barrier")
    if DIAG:
        a.e("s_memtime s[96:97]")
        a.e("s_waitcnt lgkmcnt(0)")
        a.e("v_writelane_b32 v255, s98, 37")
        a.e("v_writelane_b32 v255, s96, 38")
        a.e("s_memrealtime s[96:97]")
        a.e("s_waitcnt lgkmcnt(0)")
        a.e("v_writelane_b32 v255, s96, 62")
        a.e(f"s_lshl_b32 s{S_T0}, s2, 3")
        a.e(f"s_add_u32 s{S_T0}, s{S_T0}, s{S_WAVE}")
        a.e(f"s_lshl_b32 s{S_T0}, s{S_T0}, 8")
        a.e(f"s_add_u32 s{S_T0}, s{S_T0}, {63 << 20}")
        a.e(f"v_lshrrev_b32 v{TT+4}, 2, v{V_LANE16}")
        a.e(f"buffer_store_dword v255, v{TT+4}, s[{SRD_O}:{SRD_O+3}], s{S_T0} offen")
    a.e(f"s_cmp_eq_u32 s{S_GRP}, 0")
    a.e("s_cbranch_scc1 K2_merge")
    a.e(f"ds_write_b64 v{TT+3}, v[{V_M}:{V_L}]")
    for k in range(16):
        a.e(f"ds_write_b128 v{TT+2}, v[{O0+4*k}:{O0+4*k+3}] offset:{1024*k}")
    a.e("s_waitcnt vmcnt(0) lgkmcnt(0)")
    a.e("s_barrier")
    a.e("s_endpgm")
    a.label("K2_merge")
    a.e(f"ds_read_b64 v[{TT+4}:{TT+5}], v{TT+3}")
    for k in range(16):
        a.e(f"ds_read_b128 v[{64+4*k}:{64+4*k+3}], v{TT+2} offset:{1024*k}")
    a.e("s_waitcnt lgkmcnt(15)")
    a.e("s_waitcnt lgkmcnt(15)")
    a.e(f"v_max_f32 v{TT}, v{V_M}, v{TT+4}")
    a.e(f"v_sub_f32 v{TT+6}, v{V_M}, v{TT}")
    a.e(f"v_sub_f32 v{TT+7}, v{TT+4}, v{TT}")
    a.e(f"v_exp_f32 v{TT+6}, v{TT+6}")
    a.e(f"v_exp_f32 v{TT+7}, v{TT+7}")
    a.e("s_nop 0")
    a.e(f"v_mul_f32 v{TT+8}, v{TT+6}, v{V_L}")
    a.e(f"v_fmac_f32 v{TT+8}, v{TT+7}, v{TT+5}")
    a.e(f"v_mov_b32 v{TT+9}, v{TT+8}")
    a.e("s_nop 1")
    a.e(f"v_permlane32_swap_b32 v{TT+8}, v{TT+9}")
    a.e("s_nop 1")
    a.e(f"v_add_f32 v{TT+8}, v{TT+8}, v{TT+9}")
    a.e(f"v_rcp_f32 v{TT+8}, v{TT+8}")
    a.e("s_nop 0")
    a.e(f"v_mul_f32 v{TT+6}, v{TT+6}, v{TT+8}")
    a.e(f"v_mul_f32 v{TT+7}, v{TT+7}, v{TT+8}")
    for r in range(64): a.e(f"v_mul_f32 v{O0+r}, v{O0+r}, v{TT+6}")
    a.e("s_waitcnt lgkmcnt(0)")
    for r in range(64): a.e(f"v_fmac_f32 v{O0+r}, v{64+r}, v{TT+7}")
    store_ctx(S_ROWA, 'c')
    a.label("K2_exit")
    a.e("s_endpgm")
    outofline(False)
    outofline(True)
    return kernel_wrap("k2_kernel", a.text(), 256, 256)
```

```python
from common import *
import struct
P = dict(A_x=16, ckv=18, wq=20, wuk=22, wuv=24, wo=26, Bx=28, Lre=30, Lim=32, Bre=34, Bim=36, Cre=38, Cim=40,
         logdt=42, Dskip=44, out=46, dbg=48, ws=50)
S_WAVE, S_RT, S_CT = 3, 4, 5
S_T0, S_T1, S_T2, S_T3 = 6, 7, 8, 9
S_LB, S_CG, S_WG, S_IT, S_HG, S_CC = 10, 11, 12, 13, 14, 15
SRD_WS, SRD_WO, SRD_CR, SRD_CI, SRD_OUT, SRD_BX, SRD_DS = 52, 56, 60, 64, 68, 72, 76
NW = 4
DEPTH = 8
LDS_BYTES = 131072
LAUNCH = f"; @launch kernel=k3_kernel grid=(256,1,1) block=({64*NW},1,1) lds={LDS_BYTES}"
ACA, ACB = 0, 64
CF0 = 128
WF0 = 192
CI0 = 208
V_L16, V_WD, V_TR, V_CD0, V_CD1, V_CR0, V_T = 224, 225, 226, 227, 228, 229, 232

def gen_k3():
    a = Asm()
    a.e("s_cmp_ge_u32 s2, 256")
    a.e("s_cbranch_scc1 K3_exit")
    a.e("s_load_dwordx16 s[16:31], s[0:1], 0")
    a.e("s_load_dwordx16 s[32:47], s[0:1], 64")
    a.e("s_load_dwordx4 s[48:51], s[0:1], 128")
    a.e("v_lshrrev_b32 v1, 6, v0")
    a.e("v_and_b32 v240, 63, v0")
    a.e(f"v_readfirstlane_b32 s{S_WAVE}, v1")
    a.e(f"s_and_b32 s{S_T0}, s2, 7")
    a.e(f"s_lshl_b32 s{S_T0}, s{S_T0}, 2")
    a.e(f"s_bfe_u32 s{S_T1}, s2, 0x20003")
    a.e(f"s_add_u32 s{S_RT}, s{S_T0}, s{S_T1}")
    a.e(f"s_lshr_b32 s{S_CT}, s2, 5")
    L = 240; X = V_T; Y = V_T + 1
    a.e(f"v_lshlrev_b32 v{V_L16}, 4, v{L}")
    a.e(f"s_lshl_b32 s{S_LB}, s{S_WAVE}, 15")
    a.e(f"v_lshrrev_b32 v{X}, 2, v{L}")
    a.e(f"v_lshlrev_b32 v{V_WD}, 10, v{X}")
    a.e(f"v_and_b32 v{X}, 3, v{L}")
    a.e(f"v_lshl_add_u32 v{V_WD}, v{X}, 4, v{V_WD}")
    a.e(f"v_lshrrev_b32 v{X}, 5, v{L}")
    a.e(f"v_lshlrev_b32 v{V_TR}, 8, v{X}")
    a.e(f"v_bfe_u32 v{X}, v{L}, 2, 2")
    a.e(f"v_lshl_add_u32 v{V_TR}, v{X}, 6, v{V_TR}")
    a.e(f"v_bfe_u32 v{X}, v{L}, 4, 1")
    a.e(f"v_lshl_add_u32 v{V_TR}, v{X}, 5, v{V_TR}")
    a.e(f"v_and_b32 v{X}, 3, v{L}")
    a.e(f"v_lshl_add_u32 v{V_TR}, v{X}, 3, v{V_TR}")
    a.e(f"v_add_u32 v{V_TR}, s{S_LB}, v{V_TR}")
    a.e("s_waitcnt lgkmcnt(0)")
    srd(a, SRD_WS, P['ws'], P['ws'] + 1, 64 << 20)
    srd(a, SRD_WO, P['wo'], P['wo'] + 1, 4096 * 512 * 2)
    a.e(f"s_lshl_b32 s{S_CG}, s{S_RT}, 19")
    a.e(f"s_lshl_b32 s{S_T0}, s{S_WAVE}, 16")
    a.e(f"s_add_u32 s{S_CG}, s{S_CG}, s{S_T0}")
    a.e(f"s_add_u32 s{S_CG}, s{S_CG}, {CTX_OFF}")
    a.e(f"s_lshl_b32 s{S_WG}, s{S_WAVE}, 20")
    a.e(f"s_lshl_b32 s{S_T0}, s{S_CT}, 7")
    a.e(f"s_add_u32 s{S_WG}, s{S_WG}, s{S_T0}")

    def a_issue(k, pos):
        a.e(f"s_add_u32 s{S_T0}, s{S_CG}, {k*1024}")
        a.e(f"s_add_u32 s{S_T1}, s{S_CG}, {k*1024 + 262144}")
        r = CF0 + pos * 8
        a.vm(f"buffer_load_dwordx4 v[{r}:{r+3}], v{V_L16}, s[{SRD_WS}:{SRD_WS+3}], s{S_T0} offen", ('c', k))
        a.vm(f"buffer_load_dwordx4 v[{r+4}:{r+7}], v{V_L16}, s[{SRD_WS}:{SRD_WS+3}], s{S_T1} offen", ('c', k))
        a.e(f"s_add_u32 m0, s{S_LB}, {pos*2048}")
        a.e(f"s_add_u32 s{S_T2}, s{S_WG}, {k*16384}")
        a.vm(f"buffer_load_dwordx4 v{V_WD}, s[{SRD_WO}:{SRD_WO+3}], s{S_T2} offen lds", ('c', k))
        a.e(f"s_add_u32 m0, s{S_LB}, {pos*2048 + 1024}")
        a.e(f"s_add_u32 s{S_T2}, s{S_T2}, 64")
        a.vm(f"buffer_load_dwordx4 v{V_WD}, s[{SRD_WO}:{SRD_WO+3}], s{S_T2} offen lds", ('c', k))
    def w_read(k, pos):
        a.wait(vm=('c', k))
        r = WF0 + (k & 1) * 8
        for un in range(2):
            a.ds(f"ds_read_b64_tr_b16 v[{r+un*4}:{r+un*4+1}], v{V_TR} offset:{pos*2048 + un*1024}", ('w', k))
            a.ds(f"ds_read_b64_tr_b16 v[{r+un*4+2}:{r+un*4+3}], v{V_TR} offset:{pos*2048 + un*1024 + 512}", ('w', k))

    NKA = 64
    for k in range(DEPTH): a_issue(k, k)
    srd(a, SRD_CR, P['Cre'], P['Cre'] + 1, 512 * 512 * 2)
    srd(a, SRD_CI, P['Cim'], P['Cim'] + 1, 512 * 512 * 2)
    srd(a, SRD_OUT, P['out'], P['out'] + 1, 2048 * 1024 * 4)
    srd(a, SRD_BX, P['Bx'], P['Bx'] + 1, 2048 * 512 * 2)
    srd(a, SRD_DS, P['Dskip'], P['Dskip'] + 1, 1024)
    a.e(f"v_lshrrev_b32 v{X}, 3, v{L}")
    a.e(f"v_and_b32 v{Y}, 7, v{L}")
    for q, dst in enumerate([V_CD0, V_CD1]):
        a.e(f"v_add_u32 v{Y+1}, {8*q}, v{X}")
        a.e(f"v_bfe_u32 v{Y+2}, v{Y+1}, 1, 3")
        a.e(f"v_xor_b32 v{Y+2}, v{Y+2}, v{Y}")
        a.e(f"v_lshlrev_b32 v{Y+2}, 4, v{Y+2}")
        a.e(f"v_lshl_add_u32 v{Y+2}, v{Y+1}, 10, v{Y+2}")
        a.e(f"v_subrev_u32 v{dst}, {1024*q}, v{Y+2}")
    a.e(f"v_and_b32 v{X}, 31, v{L}")
    a.e(f"v_lshlrev_b32 v{Y}, 7, v{X}")
    a.e(f"v_add_u32 v{Y}, s{S_LB}, v{Y}")
    a.e(f"v_bfe_u32 v{Y+1}, v{L}, 1, 3")
    a.e(f"v_lshrrev_b32 v{Y+2}, 5, v{L}")
    a.e(f"v_xor_b32 v{Y+1}, v{Y+1}, v{Y+2}")
    a.e(f"v_lshl_add_u32 v{V_CR0}, v{Y+1}, 4, v{Y}")
    a.e(f"s_lshl_b32 s{S_CC}, s{S_CT}, 16")
    a.e(f"s_lshl_b32 s{S_T0}, s{S_WAVE}, 8")
    a.e(f"s_add_u32 s{S_CC}, s{S_CC}, s{S_T0}")
    a.e(f"s_lshl_b32 s{S_HG}, s{S_RT}, 17")
    a.e(f"s_lshl_b32 s{S_T0}, s{S_WAVE}, 14")
    a.e(f"s_add_u32 s{S_HG}, s{S_HG}, s{S_T0}")
    a.e(f"s_add_u32 s{S_HG}, s{S_HG}, {HF_OFF}")
    a.e(f"s_mov_b32 s{S_T3}, 0x05040100")
    a.e(f"s_mov_b32 s{S_IT}, 0x07060302")

    def c_dma(blk, mat):
        sd = SRD_CR if mat == 0 else SRD_CI
        base = (16384 if blk == 0 else 0) + mat * 8192
        for qq in range(4):
            a.e(f"s_add_u32 m0, s{S_LB}, {base + qq*2048}")
            a.e(f"s_add_u32 s{S_T0}, s{S_CC}, {blk*128 + qq*16384}")
            a.vm(f"buffer_load_dwordx4 v{V_CD0}, s[{sd}:{sd+3}], s{S_T0} offen lds", ('cd', blk))
            a.vm(f"buffer_load_dwordx4 v{V_CD1}, s[{sd}:{sd+3}], s{S_T0} offen offset:1024 lds", ('cd', blk))
    def h_issue(k):
        a.e(f"s_add_u32 s{S_T0}, s{S_HG}, {k*1024}")
        a.e(f"s_add_u32 s{S_T1}, s{S_HG}, {k*1024 + 65536}")
        r = CF0 + (k % DEPTH) * 8
        a.vm(f"buffer_load_dwordx4 v[{r}:{r+3}], v{V_L16}, s[{SRD_WS}:{SRD_WS+3}], s{S_T0} offen", ('h', k))
        a.vm(f"buffer_load_dwordx4 v[{r+4}:{r+7}], v{V_L16}, s[{SRD_WS}:{SRD_WS+3}], s{S_T1} offen", ('h', k))

    w_read(0, 0)
    for k in range(NKA):
        pos = k % DEPTH
        if k + 1 < NKA: w_read(k + 1, (k + 1) % DEPTH)
        a.wait(lg=('w', k))
        for mt in range(2):
            for un in range(2):
                D = vr(ACA + (mt * 2 + un) * 16, 16)
                a.e(mfma(D, vr(CF0 + pos * 8 + mt * 4, 4), vr(WF0 + (k & 1) * 8 + un * 4, 4), "0" if k == 0 else D))
        if k + DEPTH < NKA:
            a_issue(k + DEPTH, pos)
        else:
            h_issue(k + DEPTH - NKA)
        if k == NKA - 12:
            c_dma(0, 0); c_dma(0, 1)
    c_dma(1, 0); c_dma(1, 1)
    for G in range(8):
        blk, Gp = G >> 2, G & 3
        if Gp == 0: a.wait(vm=('cd', blk))
        if Gp: a.e(f"v_xor_b32 v{X}, {32*Gp}, v{V_CR0}")
        va = X if Gp else V_CR0
        for un in range(2):
            for mat in range(2):
                r = CI0 + (un * 2 + mat) * 4
                a.ds(f"ds_read_b128 v[{r}:{r+3}], v{va} offset:{(16384 if blk == 0 else 0) + mat*8192 + un*4096}", ('cr', G))
        a.wait(lg=('cr', G))
        for st in range(2):
            for un in range(2):
                re, im = CI0 + un * 8 + 2 * st, CI0 + un * 8 + 4 + 2 * st
                w = WF0 + st * 8 + un * 4
                a.e(f"v_perm_b32 v{w}, v{im}, v{re}, s{S_T3}")
                a.e(f"v_perm_b32 v{w+1}, v{im}, v{re}, s{S_IT}")
                a.e(f"v_perm_b32 v{w+2}, v{im+1}, v{re+1}, s{S_T3}")
                a.e(f"v_perm_b32 v{w+3}, v{im+1}, v{re+1}, s{S_IT}")
        a.e("s_nop 1")
        for st in range(2):
            k = 2 * G + st
            a.wait(vm=('h', k))
            for mt in range(2):
                for un in range(2):
                    D = vr(ACB + (mt * 2 + un) * 16, 16)
                    a.e(mfma(D, vr(CF0 + (k % DEPTH) * 8 + mt * 4, 4), vr(WF0 + st * 8 + un * 4, 4), "0" if k == 0 else D))
            if k + DEPTH < 16: h_issue(k + DEPTH)
    XB = CF0
    a.e(f"v_and_b32 v{X}, 31, v{L}")
    a.e(f"v_lshrrev_b32 v{Y}, 5, v{L}")
    a.e(f"s_lshl_b32 s{S_T0}, s{S_CT}, 6")
    a.e(f"s_and_b32 s{S_T1}, s{S_WAVE}, 1")
    a.e(f"s_lshl_b32 s{S_T1}, s{S_T1}, 5")
    a.e(f"s_add_u32 s{S_T0}, s{S_T0}, s{S_T1}")
    a.e(f"s_lshl_b32 s{S_T1}, s{S_RT}, 6")
    a.e(f"s_lshr_b32 s{S_T2}, s{S_WAVE}, 1")
    a.e(f"s_lshl_b32 s{S_T2}, s{S_T2}, 5")
    a.e(f"s_add_u32 s{S_T1}, s{S_T1}, s{S_T2}")
    a.e(f"v_add_u32 v{X}, s{S_T0}, v{X}")
    a.e(f"v_lshlrev_b32 v{Y+1}, 1, v{X}")
    a.vm(f"buffer_load_ushort v{XB+16}, v{Y+1}, s[{SRD_DS}:{SRD_DS+3}], 0 offen", 'xb')
    a.e(f"v_lshl_add_u32 v{Y+1}, v{Y}, 12, v{Y+1}")
    a.e(f"s_lshl_b32 s{S_T2}, s{S_T1}, 10")
    for r in range(16):
        ro = 8 * (r >> 2) + (r & 3)
        if (r & 3) == 0: a.e(f"s_add_u32 s{S_CG}, s{S_T2}, {8 * (r >> 2) * 1024}")
        a.vm(f"buffer_load_ushort v{XB+r}, v{Y+1}, s[{SRD_BX}:{SRD_BX+3}], s{S_CG} offen offset:{(r & 3) * 1024}", 'xb')
    a.e(f"v_lshlrev_b32 v{Y+2}, 2, v{X}")
    a.e(f"v_lshl_add_u32 v{Y+2}, v{Y}, 14, v{Y+2}")
    a.e(f"s_lshl_b32 s{S_WG}, s{S_T1}, 12")
    a.e(f"v_add_u32 v{V_WD}, s{S_LB}, v{V_L16}")
    a.e("s_nop 7")
    a.e("s_nop 7")
    for t in range(8):
        for g in range(4):
            a.e(f"ds_write_b128 v{V_WD}, v[{t*16+4*g}:{t*16+4*g+3}] offset:{t*4096 + g*1024}")
    a.e("s_waitcnt lgkmcnt(0)")
    a.e("s_barrier")
    a.e(f"s_lshl_b32 s{S_T0}, s{S_WAVE}, 12")
    a.e(f"v_add_u32 v{V_WD}, s{S_T0}, v{V_L16}")
    a.e(f"v_add_u32 v{V_TR}, 0x10000, v{V_WD}")
    for part in range(2):
        for w in range(4):
            for g in range(4):
                r = part * 64 + w * 16 + 4 * g
                a.e(f"ds_read_b128 v[{r}:{r+3}], v{V_WD if w < 2 else V_TR} offset:{(w & 1) * 32768 + part * 16384 + g * 1024}")
    a.e("s_waitcnt lgkmcnt(15)")
    a.e("s_waitcnt lgkmcnt(15)")
    a.e("s_waitcnt lgkmcnt(0)")
    for part in range(2):
        b = part * 64
        for r in range(16):
            a.e(f"v_add_f32 v{b+r}, v{b+r}, v{b+16+r}")
            a.e(f"v_add_f32 v{b+32+r}, v{b+32+r}, v{b+48+r}")
        for r in range(16):
            a.e(f"v_add_f32 v{b+r}, v{b+r}, v{b+32+r}")
    for r in range(0, 16, 2):
        a.e(f"v_cvt_pk_bf16_f32 v{16+r}, v{r}, v{r+1}")
        a.e(f"v_and_b32 v{17+r}, 0xffff0000, v{16+r}")
        a.e(f"v_lshlrev_b32 v{16+r}, 16, v{16+r}")
    for r in range(16):
        if (r & 3) == 0: a.e(f"s_add_u32 s{S_T0}, s{S_WG}, {8 * (r >> 2) * 4096}")
        if (r & 3): a.e(f"s_add_u32 s{S_T0}, s{S_T0}, 4096")
        a.e(f"buffer_store_dword v{16+r}, v{Y+2}, s[{SRD_OUT}:{SRD_OUT+3}], s{S_T0} offen")
    a.e("s_waitcnt vmcnt(16)")
    a.e(f"v_lshlrev_b32 v{XB+16}, 16, v{XB+16}")
    for r in range(16):
        a.e(f"v_lshlrev_b32 v{XB+r}, 16, v{XB+r}")
        a.e(f"v_mul_f32 v{XB+r}, v{XB+r}, v{XB+16}")
    for r in range(0, 16, 2):
        a.e(f"v_cvt_pk_bf16_f32 v{XB+r}, v{XB+r}, v{XB+r+1}")
        a.e(f"v_and_b32 v{XB+r+1}, 0xffff0000, v{XB+r}")
        a.e(f"v_lshlrev_b32 v{XB+r}, 16, v{XB+r}")
        a.e(f"v_add_f32 v{64+r}, v{64+r}, v{XB+r}")
        a.e(f"v_add_f32 v{64+r+1}, v{64+r+1}, v{XB+r+1}")
    for r in range(16):
        if (r & 3) == 0: a.e(f"s_add_u32 s{S_T0}, s{S_WG}, {8 * (r >> 2) * 4096}")
        if (r & 3): a.e(f"s_add_u32 s{S_T0}, s{S_T0}, 4096")
        a.e(f"buffer_store_dword v{64+r}, v{Y+2}, s[{SRD_OUT}:{SRD_OUT+3}], s{S_T0} offen offset:2048")
    a.label("K3_exit")
    a.e("s_endpgm")
    return kernel_wrap("k3_kernel", a.text(), 248, 248)
```

```python
import sys, os
sys.path.insert(0, os.path.dirname(__file__))
from common import *
import k1
k1.DIAG = bool(os.environ.get('DIAG'))
parts = []
launch = []
which = sys.argv[2].split(",") if len(sys.argv) > 2 else ["k1", "k2", "k3"]
if "k1" in which:
    launch.append("; @launch kernel=k1_kernel grid=(256,1,1) block=(256,1,1) lds=%d" % k1.LDS_BYTES)
    parts.append(k1.gen_k1())
if "k2" in which:
    import k2
    k2.DIAG = bool(os.environ.get('DIAG2'))
    launch.append("; @launch kernel=k2_kernel grid=(256,1,1) block=(512,1,1) lds=163840")
    parts.append(k2.gen_k2())
if "k3" in which:
    import k3
    launch.append(k3.LAUNCH)
    parts.append(k3.gen_k3())
hdr = open("concat_heads__compressed_kv_cla__ssm_conv_s5__prompt.s.ref").read().split("; Override launch")[0]
out = hdr + "\n".join(launch) + '\n.amdgcn_target "amdgcn-amd-amdhsa--gfx950"\n' + "\n".join(parts)
open(sys.argv[1], "w").write(out)
print("wrote", sys.argv[1], len(out), "bytes")
```

```python
KF_OFF  = 0
VF_OFF  = 16 << 20
CTX_OFF = 32 << 20
BU_OFF  = 48 << 20
E32_OFF = 56 << 20
TAB_OFF = 57 << 20
HF_OFF  = 58 << 20

KA = dict(A_x=0, A_c_kv=8, A_w_q=16, A_w_uk=24, A_w_uv=32, A_w_o=40, B_x=48, B_Lre=56, B_Lim=64,
          B_Bre=72, B_Bim=80, B_Cre=88, B_Cim=96, B_logdt=104, B_Dskip=112, out=120, dbg=128, ws=136)

def vr(b, n=1):
    return f"v{b}" if n == 1 else f"v[{b}:{b+n-1}]"
def ar(b, n=1):
    return f"a{b}" if n == 1 else f"a[{b}:{b+n-1}]"
def sr(b, n=1):
    return f"s{b}" if n == 1 else f"s[{b}:{b+n-1}]"

class Asm:
    def __init__(self):
        self.lines = []
        self.vmq = []
        self.lgq = []
        self.uid = 0
    def e(self, s):
        self.lines.append("  " + s)
    def label(self, s):
        self.lines.append(s + ":")
    def comment(self, s):
        self.lines.append("  ; " + s)
    def vm(self, s, tag=None):
        self.e(s); self.vmq.append(tag)
    def ds(self, s, tag=None):
        self.e(s); self.lgq.append(tag)
    def _cnt(self, q, tag):
        idx = None
        for i, t in enumerate(q):
            if t == tag: idx = i
        if idx is None: return None
        return len(q) - 1 - idx
    def wait(self, vm=None, lg=None):
        parts = []
        if vm is not None:
            tags = vm if isinstance(vm, (list, tuple)) and not isinstance(vm, str) and (len(vm) == 0 or isinstance(vm[0], (tuple, str))) and isinstance(vm, list) else [vm]
            ns = [self._cnt(self.vmq, t) for t in tags]
            ns = [n for n in ns if n is not None]
            if ns:
                n = min(ns)
                self.vmq = self.vmq[len(self.vmq) - n:] if n > 0 else []
                parts.append(f"vmcnt({min(n, 63)})")
        if lg is not None:
            tags = lg if isinstance(lg, list) else [lg]
            ns = [self._cnt(self.lgq, t) for t in tags]
            ns = [n for n in ns if n is not None]
            if ns:
                n = min(ns)
                self.lgq = self.lgq[len(self.lgq) - n:] if n > 0 else []
                parts.append(f"lgkmcnt({min(n, 15)})")
        if parts:
            self.e("s_waitcnt " + " ".join(parts))
    def wait_all(self, vm=True, lg=True):
        parts = []
        if vm: parts.append("vmcnt(0)"); self.vmq = []
        if lg: parts.append("lgkmcnt(0)"); self.lgq = []
        self.e("s_waitcnt " + " ".join(parts))
    def newlabel(self, p="L"):
        self.uid += 1
        return f"{p}_{self.uid}"
    def text(self):
        return "\n".join(self.lines) + "\n"

def srd(a, s, base_lo, base_hi, nbytes):
    a.e(f"s_mov_b32 s{s}, s{base_lo}")
    a.e(f"s_and_b32 s{s+1}, s{base_hi}, 0xffff")
    a.e(f"s_mov_b32 s{s+2}, {nbytes}")
    a.e(f"s_mov_b32 s{s+3}, 0x00020000")

def srd_off(a, s, base_lo, base_hi, off, nbytes):
    a.e(f"s_add_u32 s{s}, s{base_lo}, {off}")
    a.e(f"s_addc_u32 s{s+1}, s{base_hi}, 0")
    a.e(f"s_and_b32 s{s+1}, s{s+1}, 0xffff")
    a.e(f"s_mov_b32 s{s+2}, {nbytes}")
    a.e(f"s_mov_b32 s{s+3}, 0x00020000")

def kernel_wrap(name, body, vgpr, accum, sgpr=102):
    return f"""
.text
.globl {name}
.p2align 8
.type {name},@function
{name}:
{body}
.section .rodata,"a"
.p2align 6
.amdhsa_kernel {name}
  .amdhsa_next_free_vgpr {vgpr}
  .amdhsa_next_free_sgpr {sgpr}
  .amdhsa_accum_offset {accum}
  .amdhsa_group_segment_fixed_size 0
  .amdhsa_kernarg_size 144
  .amdhsa_user_sgpr_count 2
  .amdhsa_user_sgpr_kernarg_segment_ptr 1
  .amdhsa_system_sgpr_workgroup_id_x 1
.end_amdhsa_kernel
"""

def mfma(d, a_, b_, c):
    return f"v_mfma_f32_32x32x16_bf16 {d}, {a_}, {b_}, {c}"


class Rec:
    def __init__(self): self.q = []
    def e(self, s): self.q.append(('e', s, None))
    def vm(self, s, tag=None): self.q.append(('vm', s, tag))
    def ds(self, s, tag=None): self.q.append(('ds', s, tag))
    def wait(self, vm=None, lg=None): self.q.append(('wait', vm, lg))
    def glue(self): self.q.append(('glue', None, None))
    def __len__(self): return len(self.q)
    def pop(self, a):
        while self.q:
            k, x, y = self.q.pop(0)
            if k == 'wait': a.wait(vm=x, lg=y); continue
            if k == 'glue': continue
            if k == 'e': a.e(x)
            elif k == 'vm': a.vm(x, y)
            elif k == 'ds': a.ds(x, y)
            if self.q and self.q[0][0] == 'glue': continue
            break

import os
RT = bool(os.environ.get('RT'))
def rt_start(a, s):
    if not RT: return
    a.e(f"s_memrealtime s[{s}:{s+1}]")
    a.e("s_waitcnt lgkmcnt(0)")
def rt_end(a, s, kidx, srd_ws, swave):
    if not RT: return
    a.e("s_waitcnt vmcnt(0) lgkmcnt(0)")
    a.e("s_memrealtime s[6:7]")
    a.e("s_waitcnt lgkmcnt(0)")
    a.e(f"v_mov_b32 v0, s{s}")
    a.e("v_mov_b32 v1, s6")
    a.e("s_lshl_b32 s6, s2, 3")
    a.e(f"s_add_u32 s6, s6, s{swave}")
    a.e("s_lshl_b32 s6, s6, 3")
    a.e(f"s_add_u32 s6, s6, {(62 << 20) + kidx * 65536}")
    a.e("v_mov_b32 v2, 0")
    a.e(f"buffer_store_dwordx2 v[0:1], v2, s[{srd_ws}:{srd_ws+3}], s6 offen")

def rt_mark(a, idx, v1, st):
    if not RT: return
    a.e("s_memrealtime s[0:1]")
    a.e("s_waitcnt lgkmcnt(0)")
    a.e(f"v_mov_b32 v{v1}, s0")
    a.e(f"v_mov_b32 v{v1+1}, 0")
    a.e(f"s_lshl_b32 s{st}, s2, 3")
    a.e(f"s_add_u32 s{st}, s{st}, s3")
    a.e(f"s_lshl_b32 s{st}, s{st}, 6")
    a.e(f"s_add_u32 s{st}, s{st}, {(62 << 20) + idx * 4}")
    a.vm(f"buffer_store_dword v{v1}, v{v1+1}, s[64:67], s{st} offen", 'rt')
```

```python
from common import *
import struct

S_WAVE, S_MB, S_U = 3, 4, 5
S_T0, S_T1, S_T2, S_T3 = 6, 7, 8, 9
S_PBL = [10, 11, 12, 13, 97]
P = dict(A_x=16, ckv=18, wq=20, wuk=22, wuv=24, wo=26, Bx=28, Lre=30, Lim=32, Bre=34, Bim=36, Cre=38, Cim=40,
         logdt=42, Dskip=44, out=46, dbg=48, ws=50)
SRD_A, SRD_W, SRD_BR, SRD_O, SRD_A2, SRD_L0, SRD_L1, SRD_L2, SRD_BI = 52, 56, 60, 64, 68, 72, 76, 80, 44
S_UO = 84
S_CU0 = 95
S_UST = 94
S_U9 = 95
S_ROT = 14
S_T4 = 15
S_AB = 100
S_AL = 101

LOG2E = 1.4426950408889634
INV2PI = 0.15915494309189535
def f2u(x):
    return "0x%08x" % struct.unpack("<I", struct.pack("<f", x))[0]

FR0 = 192
NF = 8
TMP = 224
RING = 5
LDS_AST = RING * 16384
LDS_TAB = LDS_AST + 65536
LDS_BYTES = LDS_TAB + 6144
DIAG = False
import os
ABL = os.environ.get('ABL', '')
STF = os.environ.get('STF1', 'sc1')
L16 = os.environ.get('L16', '1') == '1'
DIAG_OFF = 63 << 20

def m16(d, a_, b_, c):
    return f"v_mfma_f32_16x16x32_bf16 {d}, {a_}, {b_}, {c}"

class Proxy:
    def __init__(self, t): self.__dict__['t'] = t
    def __getattr__(self, k): return getattr(self.__dict__['t'], k)
    def __setattr__(self, k, v):
        if k == 't': self.__dict__['t'] = v
        else: setattr(self.__dict__['t'], k, v)

SRD_PF = 72
def gen_type(A, typ):
    a = Proxy(A)
    urgent = Rec(); lazy = Rec()
    def rec(q, f, *args):
        a.t = q; f(*args); a.t = A
    def ensure(tag):
        for q in (urgent, lazy):
            while any(k in ('vm', 'ds') and y == tag for k, x, y in q.q):
                q.pop(A)
    isS = typ.startswith("S")
    kv = typ[0] if not isS else 'K'
    if not isS:
        phases = [(kv, 2, 0, 0), (kv, 2, 2, 64), (kv, 2, 4, 0), (kv, 2, 6, 64), (kv, 2, 8, 0)]
    else:
        phases = [('S', 2, 0, 0), ('S', 2, 2, 64), ('S', 2, 4, 0)]
    LASTS = 99
    T = TMP
    if not isS:
        V_TR = [[240, 241], [242, 243]]; V_DQ = [244, 245, 246, 247]; V_OO = [128, 129, 130, 131]; V_SQ = [250, 251]; V_AR = [252, 253]
    else:
        V_SR = [[[240, 241], [242, 243]], [[244, 245], [246, 247]]]
        V_SQ = [248, 249]; V_AR = [250, 251]
        V_TR = [[128, 129], [130, 131]]; V_DQ = [132, 133, 134, 135]; V_OO = [136, 137]
        V_BO = T + 12; V_EO = T + 13; V_CT = T + 14
    def lane_id(r):
        a.e(f"v_mbcnt_lo_u32_b32 v{r}, -1, 0")
        a.e(f"v_mbcnt_hi_u32_b32 v{r}, -1, v{r}")
    def setup_kv_regs(L, X, Y):
        lane_id(L)
        a.e(f"v_lshrrev_b32 v{X}, 4, v{L}")
        a.e(f"v_lshlrev_b32 v{V_TR[0][0]}, 9, v{X}")
        a.e(f"v_bfe_u32 v{Y}, v{L}, 2, 2")
        a.e(f"v_lshl_add_u32 v{V_TR[0][0]}, v{Y}, 6, v{V_TR[0][0]}")
        a.e(f"v_and_b32 v{Y}, 3, v{L}")
        a.e(f"v_lshl_add_u32 v{V_TR[0][0]}, v{Y}, 3, v{V_TR[0][0]}")
        a.e(f"v_and_b32 v{X}, 1, v{X}")
        a.e(f"v_lshl_add_u32 v{V_TR[0][0]}, v{X}, 5, v{V_TR[0][0]}")
        a.e(f"v_xor_b32 v{V_TR[0][1]}, 32, v{V_TR[0][0]}")
        a.e(f"v_add_u32 v{V_TR[1][0]}, 0x10000, v{V_TR[0][0]}")
        a.e(f"v_add_u32 v{V_TR[1][1]}, 0x10000, v{V_TR[0][1]}")
        a.e(f"v_lshrrev_b32 v{X}, 5, v{L}")
        a.e(f"v_lshlrev_b32 v{X}, 1, v{X}")
        a.e(f"v_xor_b32 v{Y}, v{X}, v{Y}")
        a.e(f"v_lshlrev_b32 v{V_DQ[0]}, 4, v{Y}")
        a.e(f"v_lshrrev_b32 v{X}, 2, v{L}")
        a.e(f"v_lshl_add_u32 v{V_DQ[0]}, v{X}, 13, v{V_DQ[0]}")
        for q in range(1, 4):
            a.e(f"v_add_u32 v{V_DQ[q]}, {16*q*8192 - 1024*q}, v{V_DQ[0]}")
        if L16:
            a.e(f"v_lshlrev_b32 v{X}, 4, v{L}")
        else:
            FS = 1024 if kv == 'K' else 4096
            a.e(f"v_and_b32 v{X}, 15, v{L}")
            a.e(f"v_lshlrev_b32 v{X}, 4, v{X}")
            a.e(f"v_bfe_u32 v{Y}, v{L}, 4, 1")
            a.e(f"v_lshl_add_u32 v{X}, v{Y}, 9, v{X}")
            a.e(f"v_lshrrev_b32 v{Y}, 5, v{L}")
            a.e(f"v_lshl_add_u32 v{X}, v{Y}, {FS.bit_length()-1}, v{X}")
        a.e(f"s_lshl_b32 s{S_T0}, s{S_MB}, 16")
        a.e(f"s_lshl_b32 s{S_T1}, s{S_WAVE}, 14")
        a.e(f"s_add_u32 s{S_T0}, s{S_T0}, s{S_T1}")
        a.e(f"v_add_u32 v{V_OO[0]}, s{S_T0}, v{X}")
        for i in range(1, 4): a.e(f"v_add_u32 v{V_OO[i]}, {4096*i}, v{V_OO[0]}")

    L = T + 15; X = T + 10; Y = T + 11
    a.e(f"v_and_b32 v{L}, 63, v0")
    a.e(f"v_lshrrev_b32 v{T}, 3, v{L}")
    a.e(f"v_and_b32 v{T+1}, 7, v{L}")
    for q in range(2):
        a.e(f"v_add_u32 v{T+2}, {8*q}, v{T}")
        a.e(f"v_bfe_u32 v{T+3}, v{T+2}, 1, 3")
        a.e(f"v_xor_b32 v{T+3}, v{T+3}, v{T+1}")
        a.e(f"v_lshlrev_b32 v{T+3}, 4, v{T+3}")
        a.e(f"v_lshl_add_u32 v{T+3}, v{T+2}, 10, v{T+3}")
        a.e(f"v_subrev_u32 v{V_SQ[q]}, {1024*q}, v{T+3}")
    a.e(f"s_lshl_b32 s{S_T0}, s{S_MB}, 18")
    a.e(f"s_lshl_b32 s{S_T1}, s{S_WAVE}, 16")
    a.e(f"s_add_u32 s{S_AB}, s{S_T0}, s{S_T1}")
    a.e(f"s_lshl_b32 s{S_AL}, s{S_WAVE}, 14")
    a.e(f"s_add_u32 s{S_AL}, s{S_AL}, {LDS_AST}")
    a.e(f"v_and_b32 v{X}, 15, v{L}")
    a.e(f"v_lshlrev_b32 v{T}, 7, v{X}")
    a.e(f"v_bfe_u32 v{T+1}, v{L}, 1, 3")
    a.e(f"v_lshrrev_b32 v{T+2}, 4, v{L}")
    a.e(f"v_xor_b32 v{T+1}, v{T+1}, v{T+2}")
    a.e(f"v_lshl_add_u32 v{T+4}, v{T+1}, 4, v{T}")
    a.e(f"v_add_u32 v{V_AR[0]}, s{S_AL}, v{T+4}")
    a.e(f"v_xor_b32 v{V_AR[1]}, 64, v{V_AR[0]}")
    if isS:
        a.e(f"v_mov_b32 v{V_SR[0][0][0]}, v{T+4}")
    wp = P['wuk'] if kv == 'K' else P['wuv']
    srd(a, SRD_W, wp, wp + 1, 512 * 4096 * 2)
    a.e(f"s_lshl_b32 s{S_T3}, s{S_WAVE}, 12")
    if not isS:
        srd(a, SRD_A, P['ckv'], P['ckv'] + 1, 2048 * 512 * 2)
        if kv == 'V':
            a.e(f"s_sub_u32 s{S_UST}, s{S_U}, 13")
            a.e(f"s_mul_i32 s{S_UST}, s{S_UST}, 10")
        else:
            a.e(f"s_mul_i32 s{S_UST}, s{S_U}, 10")
        a.e(f"s_min_u32 s{S_UST}, s{S_UST}, 118")
        unit_expr = [(S_UST, i) for i in range(10)]
    else:
        srd(a, SRD_A, P['Bx'], P['Bx'] + 1, 2048 * 512 * 2)
        srd(a, SRD_BR, P['Bre'], P['Bre'] + 1, 512 * 512 * 2)
        srd(a, SRD_BI, P['Bim'], P['Bim'] + 1, 512 * 512 * 2)
        a.e(f"s_sub_u32 s{S_CU0}, s{S_U}, 26")
        a.e(f"s_mul_i32 s{S_CU0}, s{S_CU0}, 6")
        a.e(f"s_min_u32 s{S_CU0}, s{S_CU0}, 26")
        unit_expr = []
    for pi, (kind, wd, u0, ab) in enumerate(phases):
        d = S_PBL[pi]
        a.e(f"s_and_b32 s{S_T1}, s{S_WAVE}, {wd-1}")
        if kind != 'S':
            sreg, off = unit_expr[u0]
            a.e(f"s_add_u32 s{S_T1}, s{S_T1}, s{sreg}")
            if off: a.e(f"s_add_u32 s{S_T1}, s{S_T1}, {off}")
            a.e(f"s_lshl_b32 s{d}, s{S_T1}, 6")
        else:
            a.e(f"s_add_u32 s{S_T1}, s{S_T1}, s{S_CU0}")
            if u0: a.e(f"s_add_u32 s{S_T1}, s{S_T1}, {u0}")
            a.e(f"s_lshl_b32 s{d}, s{S_T1}, 14")
    if not isS: setup_kv_regs(L, X, Y)

    nst = [0]
    VST = 254
    def stamp():
        if not DIAG: return
        if nst[0] > 0:
            a.e("s_waitcnt lgkmcnt(0)"); a.lgq = []
            a.e(f"v_writelane_b32 v{VST}, s98, {nst[0]-1}")
        a.e("s_memtime s[98:99]")
        nst[0] += 1
    def stamp_end():
        if not DIAG: return
        stamp()
        a.e("s_waitcnt vmcnt(0)")
        stamp()
        a.e("s_waitcnt lgkmcnt(0)")
        a.e(f"v_writelane_b32 v{VST}, s98, {nst[0]-1}")
        lane_id(0)
        a.e("v_lshlrev_b32 v0, 2, v0")
        a.e(f"s_lshl_b32 s6, s2, 2")
        a.e(f"s_add_u32 s6, s6, s{S_WAVE}")
        a.e(f"s_lshl_b32 s6, s6, 8")
        a.e(f"s_add_u32 s6, s6, {DIAG_OFF}")
        a.e(f"buffer_store_dword v{VST}, v0, s[{SRD_O}:{SRD_O+3}], s6 offen")
    stamp()

    slots = []
    for pi, (kind, wd, u0, ab) in enumerate(phases):
        for sl in range(2 * wd):
            slots.append((pi, sl))
    NS = len(slots); R = RING
    def issue_dma(n):
        pi, sl = slots[n]
        kind, wd, u0, ab = phases[pi]
        base = (n % R) * 16384
        lg = {4: 2, 2: 1, 1: 0}[wd]
        a.e(f"s_lshr_b32 s{S_T0}, s{S_WAVE}, {lg}")
        a.e(f"s_add_u32 s{S_T0}, s{S_T0}, s{S_ROT}")
        a.e(f"s_add_u32 s{S_T0}, s{S_T0}, {sl * (4 // wd)}")
        a.e(f"s_and_b32 s{S_T0}, s{S_T0}, 7")
        a.e(f"s_lshl_b32 s{S_T0}, s{S_T0}, {19 if kind != 'S' else 7}")
        a.e(f"s_add_u32 m0, s{S_T3}, {base}")
        a.e(f"s_add_u32 s{S_T0}, s{S_T0}, s{S_PBL[pi]}")
        for q in range(4):
            if kind == 'S':
                sd = SRD_BR if q < 2 else SRD_BI; vq = V_SQ[q & 1]; io = 1024 * (q & 1)
                if q == 2:
                    a.e(f"s_add_u32 m0, s{S_T3}, {base + 2048}")
                    a.e("s_nop 0")
            else:
                sd = SRD_W; vq = V_DQ[q]; io = 1024 * q
            a.vm(f"buffer_load_dwordx4 v{vq}, s[{sd}:{sd+3}], s{S_T0} offen offset:{io} lds", ('dma', n))
    def a_dma(c, sdA, tagp):
        a.e(f"s_add_u32 s{S_T4}, s{S_ROT}, {c}")
        a.e(f"s_and_b32 s{S_T4}, s{S_T4}, 7")
        a.e(f"s_lshl_b32 s{S_T4}, s{S_T4}, 7")
        a.e(f"s_add_u32 s{S_T4}, s{S_T4}, s{S_AB}")
        for qq in range(4):
            a.e(f"s_add_u32 m0, s{S_AL}, {(c & 1) * 8192 + qq * 2048}")
            if qq: a.e(f"s_add_u32 s{S_T4}, s{S_T4}, 16384")
            else: a.e("s_nop 0")
            for q in range(2):
                a.vm(f"buffer_load_dwordx4 v{V_SQ[q]}, s[{sdA}:{sdA+3}], s{S_T4} offen offset:{1024*q} lds", (tagp, c))
    def a_read(c, tagp):
        a.wait(vm=(tagp, c))
        for up in range(2):
            for mt in range(4):
                r = ((2 * c + up) * 4 + mt) * 4
                a.ds(f"ds_read_b128 a[{r}:{r+3}], v{V_AR[up]} offset:{(c & 1) * 8192 + mt * 2048}", (tagp + 'r', c))

    if isS:
        srd(a, SRD_L0, P['Lre'], P['Lre'] + 1, 1024)
        srd(a, SRD_L1, P['Lim'], P['Lim'] + 1, 1024)
        srd(a, SRD_L2, P['logdt'], P['logdt'] + 1, 1024)
        r0 = T + 6
        a.e(f"s_and_b32 s{S_T0}, s{S_WAVE}, 1")
        a.e(f"s_lshl_b32 s{S_T0}, s{S_T0}, 6")
        a.e(f"s_lshl_b32 s{S_T1}, s{S_CU0}, 4")
        a.e(f"s_add_u32 s{S_T1}, s{S_T1}, s{S_T0}")
        a.e(f"s_lshl_b32 s{S_T2}, s{S_T1}, 1")
        a.e(f"v_lshlrev_b32 v{r0+3}, 1, v{L}")
        a.vm(f"buffer_load_ushort v{r0}, v{r0+3}, s[{SRD_L0}:{SRD_L0+3}], s{S_T2} offen", 'par')
        a.vm(f"buffer_load_ushort v{r0+1}, v{r0+3}, s[{SRD_L1}:{SRD_L1+3}], s{S_T2} offen", 'par')
        a.vm(f"buffer_load_ushort v{r0+2}, v{r0+3}, s[{SRD_L2}:{SRD_L2+3}], s{S_T2} offen", 'par')
    issue_dma(0)
    a_dma(0, SRD_A, 'A')
    a_dma(1, SRD_A, 'A')
    issue_dma(1)
    dma_next = 2
    srd(a, SRD_O, P['ws'], P['ws'] + 1, 64 << 20)
    obase = KF_OFF if kv == 'K' else VF_OFF
    osh = (10 if kv == 'K' else 11) if L16 else (11 if kv == 'K' else 10)
    for i, (sreg, off) in enumerate(unit_expr):
        a.e(f"s_add_u32 s{S_T0}, s{sreg}, {off}")
        a.e(f"s_lshr_b32 s{S_T1}, s{S_T0}, 2")
        a.e(f"s_lshl_b32 s{S_T1}, s{S_T1}, 19")
        a.e(f"s_and_b32 s{S_T0}, s{S_T0}, 3")
        a.e(f"s_lshl_b32 s{S_T0}, s{S_T0}, {osh}")
        a.e(f"s_add_u32 s{S_T0}, s{S_T0}, s{S_T1}")
        a.e(f"s_add_u32 s{S_UO+i}, s{S_T0}, {obase}")

    def s_pow(n, ra, rb, rd, rt):
        a.e(f"v_mul_f32 v{rt}, {f2u(float(n))}, v{ra}")
        a.e(f"v_mul_f32 v{rd+1}, {f2u(float(n))}, v{rb}")
        a.e(f"v_exp_f32 v{rt}, v{rt}")
        a.e(f"v_fract_f32 v{rd+1}, v{rd+1}")
        a.e(f"v_cos_f32 v{rd}, v{rd+1}")
        a.e(f"v_sin_f32 v{rd+1}, v{rd+1}")
        a.e("s_nop 0")
        a.e(f"v_mul_f32 v{rd}, v{rd}, v{rt}")
        a.e(f"v_mul_f32 v{rd+1}, v{rd+1}, v{rt}")

    if isS:
        a.e(f"v_and_b32 v{X}, 15, v{L}")
        a.e(f"v_xor_b32 v{V_SR[0][0][1]}, 64, v{V_SR[0][0][0]}")
        for up in range(2):
            a.e(f"v_add_u32 v{V_SR[0][1][up]}, 2048, v{V_SR[0][0][up]}")
        for t in range(2):
            for up in range(2):
                a.e(f"v_add_u32 v{V_SR[1][t][up]}, 0x10000, v{V_SR[0][t][up]}")
        a.e(f"s_lshl_b32 s{S_T0}, s{S_MB}, 3")
        a.e(f"s_lshl_b32 s{S_T1}, s{S_WAVE}, 1")
        a.e(f"s_add_u32 s{S_T0}, s{S_T0}, s{S_T1}")
        a.e(f"s_lshl_b32 s{S_T1}, s{S_T0}, 17")
        a.e(f"v_lshlrev_b32 v{V_BO}, 4, v{X}")
        a.e(f"v_bfe_u32 v{T+1}, v{L}, 4, 1")
        a.e(f"v_lshl_add_u32 v{V_BO}, v{T+1}, 9, v{V_BO}")
        a.e(f"v_lshrrev_b32 v{T+1}, 5, v{L}")
        a.e(f"v_lshl_add_u32 v{V_BO}, v{T+1}, 10, v{V_BO}")
        a.e(f"v_add_u32 v{V_BO}, s{S_T1}, v{V_BO}")
        a.e(f"s_lshl_b32 s{S_T1}, s{S_T0}, 12")
        a.e(f"v_lshlrev_b32 v{V_EO}, 3, v{X}")
        a.e(f"v_add_u32 v{V_EO}, s{S_T1}, v{V_EO}")
        a.e(f"v_lshlrev_b32 v{V_CT}, 3, v{X}")
        a.e(f"v_add_u32 v{V_CT}, {LDS_TAB}, v{V_CT}")
        r0 = T + 6
        a.e(f"s_and_b32 s{S_T0}, s{S_WAVE}, 1")
        a.e(f"s_lshl_b32 s{S_T0}, s{S_T0}, 6")
        a.e(f"s_lshl_b32 s{S_T1}, s{S_CU0}, 4")
        a.e(f"s_add_u32 s{S_T1}, s{S_T1}, s{S_T0}")
        a.e(f"s_lshl_b32 s{S_T2}, s{S_T1}, 3")
        a.e(f"s_add_u32 s{S_T2}, s{S_T2}, {TAB_OFF}")
        a.e(f"v_lshlrev_b32 v{Y}, 3, v{L}")
        YM = 138
        a.e(f"v_add_u32 v{YM}, s{S_T1}, v{L}")
        a.e(f"v_cmp_gt_u32 vcc, 512, v{YM}")
        a.e(f"v_mov_b32 v{YM}, 0x7f000000")
        a.e("s_nop 0")
        a.e(f"v_cndmask_b32 v{YM}, v{YM}, v{Y}, vcc")
        a.e(f"s_lshl_b32 s{S_T0}, s{S_T0}, 3")
        a.e(f"s_add_u32 s{S_T0}, s{S_T0}, {LDS_TAB}")
        a.e(f"v_add_u32 v{X}, s{S_T0}, v{Y}")
        a.wait(vm='par')
        a.e(f"v_lshlrev_b32 v{r0}, 16, v{r0}")
        a.e(f"v_lshlrev_b32 v{r0+1}, 16, v{r0+1}")
        a.e(f"v_lshlrev_b32 v{r0+2}, 16, v{r0+2}")
        a.e(f"v_mul_f32 v{r0+2}, {f2u(LOG2E)}, v{r0+2}")
        a.e(f"v_exp_f32 v{r0+2}, v{r0+2}")
        a.e("s_nop 0")
        a.e(f"v_cvt_pk_bf16_f32 v{r0+2}, v{r0+2}, v{r0+2}")
        a.e(f"v_lshlrev_b32 v{r0+3}, 16, v{r0+2}")
        a.e(f"v_mul_f32 v{r0+2}, v{r0+3}, v{r0}")
        a.e(f"v_mul_f32 v{r0+3}, v{r0+3}, v{r0+1}")
        a.e(f"v_mul_f32 v{r0+2}, {f2u(LOG2E)}, v{r0+2}")
        a.e(f"v_mul_f32 v{r0+3}, {f2u(INV2PI)}, v{r0+3}")
        lb = a.newlabel("K1tb"); le = a.newlabel("K1te")
        a.e(f"s_cmp_ge_u32 s{S_WAVE}, 2")
        a.e(f"s_cbranch_scc1 {lb}")
        vq0 = list(a.vmq); lq0 = list(a.lgq)
        def gst(kidx, rd):
            a.e(f"s_add_u32 s{S_T1}, s{S_T2}, {kidx*4096}")
            a.e(f"buffer_store_dwordx2 v[{rd}:{rd+1}], v{T+5 if False else YM}, s[{SRD_O}:{SRD_O+3}], s{S_T1} offen")
        s_pow(1, r0 + 2, r0 + 3, T, T + 4)
        a.e(f"ds_write_b64 v{X}, v[{T}:{T+1}]")
        gst(0, T)
        a.e(f"v_mul_f32 v{T+4}, v{r0}, v{r0}")
        a.e(f"v_fmac_f32 v{T+4}, v{r0+1}, v{r0+1}")
        a.e(f"v_rcp_f32 v{T+4}, v{T+4}")
        a.e(f"v_add_f32 v{T+5}, -1.0, v{T}")
        a.e(f"v_add_f32 v{T+4}, v{T+4}, v{T+4}")
        a.e(f"v_mul_f32 v{T+2}, v{T+5}, v{r0}")
        a.e(f"v_fmac_f32 v{T+2}, v{T+1}, v{r0+1}")
        a.e(f"v_mul_f32 v{T+3}, v{T+1}, v{r0}")
        a.e(f"v_fma_f32 v{T+3}, -v{T+5}, v{r0+1}, v{T+3}")
        a.e(f"v_mul_f32 v{T+2}, v{T+2}, v{T+4}")
        a.e(f"v_mul_f32 v{T+3}, v{T+3}, v{T+4}")
        gst(6, T + 2)
        s_pow(16, r0 + 2, r0 + 3, T, T + 4)
        a.e(f"ds_write_b64 v{X}, v[{T}:{T+1}] offset:1024")
        s_pow(12, r0 + 2, r0 + 3, T + 2, T + 4)
        a.e(f"ds_write_b64 v{X}, v[{T+2}:{T+3}] offset:2048")
        s_pow(8, r0 + 2, r0 + 3, T, T + 4)
        a.e(f"ds_write_b64 v{X}, v[{T}:{T+1}] offset:3072")
        gst(1, T)
        s_pow(4, r0 + 2, r0 + 3, T + 2, T + 4)
        a.e(f"ds_write_b64 v{X}, v[{T+2}:{T+3}] offset:4096")
        a.e(f"v_mov_b32 v{T+4}, 1.0")
        a.e(f"v_mov_b32 v{T+5}, 0")
        a.e(f"ds_write_b64 v{X}, v[{T+4}:{T+5}] offset:5120")
        gst(1, T)
        a.e("s_waitcnt lgkmcnt(0)")
        a.e(f"s_branch {le}")
        a.label(lb)
        for kidx, n in [(2, 32), (3, 512), (4, 1024), (5, 1536)]:
            rd = T if kidx % 2 == 0 else T + 2
            s_pow(n, r0 + 2, r0 + 3, rd, T + 4)
            gst(kidx, rd)
        a.label(le)
        a.vmq += ['tab'] * 4
        a.e(f"v_lshrrev_b32 v{L}, 4, v{L}")
        a.e(f"v_lshl_add_u32 v{L}, v{L}, 10, v{V_CT}")

    tmpi = [0]
    def acc_of(ab, u, t, mt):
        return ab + u * 32 + (t * 4 + mt) * 4
    def kv_unit_items(kind, ab, u, uidx):
        items = []
        for kt in range(2):
            for x in range(2):
                def f(kt=kt, x=x):
                    t = T + 4 * (tmpi[0] % 3); tmpi[0] += 1
                    if kind == 'K':
                        mt = 2 * kt + x
                        r1, r2 = acc_of(ab, u, 0, mt), acc_of(ab, u, 1, mt)
                    else:
                        r1, r2 = acc_of(ab, u, x, 2 * kt), acc_of(ab, u, x, 2 * kt + 1)
                    a.e(f"v_cvt_pk_bf16_f32 v{t}, v{r1}, v{r1+1}")
                    a.e(f"v_cvt_pk_bf16_f32 v{t+1}, v{r1+2}, v{r1+3}")
                    a.e(f"v_cvt_pk_bf16_f32 v{t+2}, v{r2}, v{r2+1}")
                    a.e(f"v_cvt_pk_bf16_f32 v{t+3}, v{r2+2}, v{r2+3}")
                    if not L16: vo, io = V_OO[2 * kt], 256 * x
                    elif kind == 'K': vo, io = V_OO[2 * kt + x], 0
                    else: vo, io = V_OO[2 * kt], 1024 * x
                    a.vm(f"buffer_store_dwordx4 v[{t}:{t+3}], v{vo}, s[{SRD_O}:{SRD_O+3}], s{S_UO+uidx} offen offset:{io} {STF}", 'st')
                items.append(f)
        return items
    def cfma(d, x, l, b_re, b_im, t):
        a.e(f"v_fma_f32 v{t}, v{x}, v{l}, v{b_re}")
        a.e(f"v_fma_f32 v{t+1}, v{x}, v{l+1}, v{b_im}")
        a.e(f"v_fma_f32 v{d}, -v{x+1}, v{l+1}, v{t}")
        a.e(f"v_fma_f32 v{d+1}, v{x+1}, v{l}, v{t+1}")
    def s_unit_items(ab, u, ui):
        items = []
        G, AC, TT = T + 6, T + 8, T + 10
        def fc():
            a.ds(f"ds_read_b64 v[{T}:{T+1}], v{V_CT} offset:{ui*128}", ('ct', ui))
            a.ds(f"ds_read_b64 v[{T+4}:{T+5}], v{V_CT} offset:{1024+ui*128}", ('ct', ui))
            a.ds(f"ds_read_b64 v[{T+2}:{T+3}], v{T+15} offset:{2048+ui*128}", ('ct', ui))
        items.append(fc)
        def st(part):
            def f():
                a.e(f"s_add_u32 s{S_T2}, s{S_CU0}, {ui}")
                a.e(f"s_lshr_b32 s{S_T2}, s{S_T2}, 1")
                a.e(f"s_lshl_b32 s{S_T2}, s{S_T2}, 13")
                for kt in range(2):
                    a.e(f"s_add_u32 s{S_T1}, s{S_T2}, {BU_OFF + part*4096 + kt*131072 + (ui&1)*256}")
                    for x in range(2):
                        r = acc_of(ab, u, part, 2 * kt + x)
                        a.vm(f"buffer_store_dwordx4 v[{r}:{r+3}], v{V_BO}, s[{SRD_O}:{SRD_O+3}], s{S_T1} offen offset:{2048*x} {STF}", 'st')
            return f
        if 'nobu' not in ABL: items.append(st(0)); items.append(st(1))
        if 'noe32' in ABL: return items
        for kt in range(2):
            for x in range(2):
                R_ = acc_of(ab, u, 0, 2 * kt + x); I_ = acc_of(ab, u, 1, 2 * kt + x)
                D_ = AC if x == 0 else G
                def f1(R_=R_, I_=I_, D_=D_):
                    a.wait(lg=('ct', ui))
                    a.e(f"v_fma_f32 v{TT}, v{R_}, v{T}, v{R_+1}")
                    a.e(f"v_fma_f32 v{TT+1}, v{R_}, v{T+1}, v{I_+1}")
                    a.e(f"v_fma_f32 v{D_}, -v{I_}, v{T+1}, v{TT}")
                    a.e(f"v_fma_f32 v{D_+1}, v{I_}, v{T}, v{TT+1}")
                def f2(R_=R_, I_=I_, D_=D_):
                    cfma(D_, D_, T, R_ + 2, I_ + 2, TT)
                def f3(R_=R_, I_=I_, D_=D_):
                    cfma(D_, D_, T, R_ + 3, I_ + 3, TT)
                items += [f1, f2, f3]
            def f4():
                cfma(AC, AC, T + 4, G, G + 1, TT)
            def f5():
                a.e(f"v_mul_f32 v{TT}, v{AC}, v{T+2}")
                a.e(f"v_mul_f32 v{TT+1}, v{AC}, v{T+3}")
                a.e(f"v_fma_f32 v{G}, -v{AC+1}, v{T+3}, v{TT}")
                a.e(f"v_fma_f32 v{G+1}, v{AC+1}, v{T+2}, v{TT+1}")
                a.e(f"v_mov_b32 v{TT}, v{G}")
                a.e(f"v_mov_b32 v{TT+1}, v{G+1}")
                a.e("s_nop 1")
                a.e(f"v_permlane32_swap_b32 v{G}, v{TT}")
                a.e(f"v_permlane32_swap_b32 v{G+1}, v{TT+1}")
            def f6():
                a.e(f"v_add_f32 v{G}, v{G}, v{TT}")
                a.e(f"v_add_f32 v{G+1}, v{G+1}, v{TT+1}")
                a.e(f"v_mov_b32 v{TT}, v{G}")
                a.e(f"v_mov_b32 v{TT+1}, v{G+1}")
                a.e("s_nop 1")
                a.e(f"v_permlane16_swap_b32 v{G}, v{TT}")
                a.e(f"v_permlane16_swap_b32 v{G+1}, v{TT+1}")
            def f7(kt=kt):
                a.e(f"v_add_f32 v{G}, v{G}, v{TT}")
                a.e(f"v_add_f32 v{G+1}, v{G+1}, v{TT+1}")
                a.e(f"s_add_u32 s{S_T2}, s{S_CU0}, {ui}")
                a.e(f"s_lshl_b32 s{S_T2}, s{S_T2}, 7")
                a.e(f"s_add_u32 s{S_T2}, s{S_T2}, {E32_OFF + kt*4096}")
                a.vm(f"buffer_store_dwordx2 v[{G}:{G+1}], v{V_EO}, s[{SRD_O}:{SRD_O+3}], s{S_T2} offen", 'st')
            items += [f4, f5, f6, f7]
        return items
    def phase_epilogue_items(pi):
        kind, wd, u0, ab = phases[pi]
        items = []
        order = list(range(wd))
        for u in order:
            items += kv_unit_items(kind, ab, u, u0 + u) if kind != 'S' else s_unit_items(ab, u, u0 + u)
        return items

    ops = []; frags = []
    for pi, (kind, wd, u0, ab) in enumerate(phases):
        for s in range(16):
            for u in range(wd):
                for t in range(2):
                    fid = len(frags); frags.append((pi, s, u, t))
                    for mt in range(4):
                        ops.append((pi, s, u, t, mt, fid))
    slot_of = {}
    for n, key in enumerate(slots): slot_of[key] = n
    def frag_loc(fid):
        pi, s, u, t = frags[fid]
        kind, wd, u0, ab = phases[pi]
        kb = s >> 1; up = s & 1
        per = 4 // wd
        return slot_of[(pi, kb // per)], (kb % per) * wd + u, up, t, kind
    def issue_frag(fid):
        n, piece, up, t, kind = frag_loc(fid)
        r = FR0 + (fid % NF) * 4
        base = (n % R) * 16384 + piece * 4096
        hi = base >> 16; base &= 0xffff
        if kind == 'S':
            a.ds(f"ds_read_b128 v[{r}:{r+3}], v{V_SR[hi][t][up]} offset:{base}", ('f', fid))
        else:
            a.ds(f"ds_read_b64_tr_b16 v[{r}:{r+1}], v{V_TR[hi][t]} offset:{base + up*2048}", ('f', fid))
            a.ds(f"ds_read_b64_tr_b16 v[{r+2}:{r+3}], v{V_TR[hi][t]} offset:{base + up*2048 + 256}", ('f', fid))

    def prefetch(names):
        for nm, nbytes in names:
            per_wave = nbytes // 1024
            a.e(f"s_mov_b32 s{SRD_PF}, s{P[nm]}")
            a.e(f"s_and_b32 s{SRD_PF+1}, s{P[nm]+1}, 0xffff")
            a.e(f"s_mov_b32 s{SRD_PF+2}, {nbytes}")
            a.e(f"s_mov_b32 s{SRD_PF+3}, 0x00020000")
            a.e(f"s_lshl_b32 s{S_T2}, s2, 2")
            if per_wave >= 1024:
                a.e(f"s_add_u32 s{S_T2}, s{S_T2}, s{S_WAVE}")
                a.e(f"s_mul_i32 s{S_T2}, s{S_T2}, {per_wave}")
                n = per_wave // 1024
            else:
                a.e(f"s_and_b32 s{S_T1}, s{S_WAVE}, 2")
                a.e(f"s_add_u32 s{S_T2}, s{S_T2}, s{S_T1}")
                a.e(f"s_mul_i32 s{S_T2}, s{S_T2}, {per_wave}")
                n = 1
            for i in range(n):
                a.vm(f"buffer_load_dwordx4 v[{V_PFD}:{V_PFD+3}], v{V_PF}, s[{SRD_PF}:{SRD_PF+3}], s{S_T2} offen offset:{1024*i}", 'pf')
    V_PF = 140; V_PFD = 144
    lane_id(V_PF)
    a.e(f"v_lshlrev_b32 v{V_PF}, 4, v{V_PF}")
    MB = 1 << 20

    a_read(0, 'A')
    a.wait(vm=('dma', 0))
    a.e("s_barrier")
    a.wait(lg=('Ar', 0))
    a_dma(2, SRD_A, 'A')
    landed = 0; fnext = 0; last_use_issued = -1; cur_slot = -1
    pend_b = None
    credit = 0.0
    for oi, (pi, s, u, t, mt, fid) in enumerate(ops):
        kind, wd, u0, ab = phases[pi]
        n = frag_loc(fid)[0]
        if n != cur_slot:
            cur_slot = n
            stamp()
            if n + 1 < NS:
                ensure(('dma', n + 1))
                a.wait(vm=('dma', n + 1))
            a.e("s_barrier")
            landed = n + 1
            slot_first = oi
        if s == 0 and u == 0 and t == 0 and mt == 0 and pi > 0:
            while len(lazy): lazy.pop(A)
            if pi == len(phases) - 1 and 'nopf' not in ABL:
                rec(lazy, prefetch, [('A_x', 2 * MB), ('wq', 4 * MB)])
            for it in phase_epilogue_items(pi - 1): rec(lazy, it)
            phase_first = oi
        def can_issue(f):
            return f < len(frags) and (f - NF) <= last_use_issued and frag_loc(f)[0] <= landed
        if oi == 0:
            while can_issue(fnext) and fnext < NF:
                issue_frag(fnext); fnext += 1
        if mt == 0:
            a.wait(lg=('f', fid))
        if u == 0 and t == 0 and mt == 0:
            if pi == 0: ensure(('Ar', s >> 1)); a.wait(lg=('Ar', s >> 1))
            elif isS and pi == LASTS + 1: ensure(('Br', s >> 1)); a.wait(lg=('Br', s >> 1))
        acc = acc_of(ab, u, t, mt)
        D = vr(acc, 4)
        C = "0" if s == 0 else D
        fr = vr(FR0 + (fid % NF) * 4, 4)
        af = ar((s * 4 + mt) * 4, 4)
        a.e(m16(D, fr, af, C) if kind == 'K' else m16(D, af, fr, C))
        if mt == 3:
            last_use_issued = fid
        budget = 2
        if mt in (1, 3) and can_issue(fnext):
            issue_frag(fnext); fnext += 1
            budget = 0 if frag_loc(fnext - 1)[4] != 'S' else 1
        rel = oi - slot_first
        if rel in (2, 34) and dma_next < NS and dma_next <= n + R - 1:
            rec(urgent, issue_dma, dma_next); dma_next += 1
        if pi == 0:
            c = s >> 1; relc = oi - c * 32
            if relc == 4 and c + 1 < 8:
                rec(urgent, a_read, c + 1, 'A')
            if relc == 16 and c + 3 < 8:
                rec(urgent, lambda: (a.wait(lg=('Ar', c + 1)), a_dma(c + 3, SRD_A, 'A')))
        if isS and pi == LASTS - 1 and rel == 10 and n == slot_of[(pi, 2)]:
            rec(urgent, a_dma, 0, SRD_A2, 'B'); rec(urgent, a_dma, 1, SRD_A2, 'B')
        if isS and pi == LASTS and (s & 1) and u == wd - 1 and t == 1 and mt == 3:
            rec(urgent, a_read, s >> 1, 'B')
            if (s >> 1) + 2 < 8:
                cc = s >> 1
                rec(urgent, lambda: (a.e("s_nop 0"), a.e("s_nop 0"), a.e("s_nop 0"), a.e("s_nop 0"), a.wait(lg=('Br', cc)), a_dma(cc + 2, SRD_A2, 'B')))
        while budget and len(urgent):
            urgent.pop(A); budget -= 1
        if len(lazy) and pi > 0 and oi - phase_first >= 6:
            rem_ops = sum(1 for o in ops[oi + 1:] if o[0] == pi) - 8
            credit += len(lazy) / max(rem_ops * 0.5, 1)
            while budget and credit >= 1 and len(lazy):
                lazy.pop(A); budget -= 1; credit -= 1
            credit = min(credit, 2.0)
    while len(urgent): urgent.pop(A)
    while len(lazy): lazy.pop(A)
    a.e("s_nop 15")
    for it in phase_epilogue_items(len(phases) - 1):
        if it: it()
    stamp_end()
    rt_end(a, 98, 0, SRD_O, S_WAVE)
    a.e("s_endpgm")

def gen_k1():
    a = Asm()
    a.e("s_cmp_ge_u32 s2, 256")
    a.e("s_cbranch_scc1 K1_exit")
    a.e("s_load_dwordx16 s[16:31], s[0:1], 0")
    a.e("s_load_dwordx16 s[32:47], s[0:1], 64")
    a.e("s_load_dwordx4 s[48:51], s[0:1], 128")
    a.e(f"v_lshrrev_b32 v1, 6, v0")
    a.e("s_nop 0")
    a.e(f"v_readfirstlane_b32 s{S_WAVE}, v1")
    a.e(f"s_lshr_b32 s{S_MB}, s2, 5")
    a.e(f"s_and_b32 s{S_U}, s2, 31")
    a.e(f"s_add_u32 s{S_ROT}, s2, s{S_MB}")
    a.e(f"s_and_b32 s{S_ROT}, s{S_ROT}, 7")
    a.e("s_waitcnt lgkmcnt(0)")
    rt_start(a, 98)
    a.e(f"s_cmp_lt_u32 s{S_U}, 13")
    a.e("s_cbranch_scc1 K1_K10")
    a.e(f"s_cmp_lt_u32 s{S_U}, 26")
    a.e("s_cbranch_scc1 K1_V10")
    a.e("s_branch K1_S6")
    a.label("K1_exit")
    a.e("s_endpgm")
    for typ in ["K10", "V10", "S6"]:
        a.label(f"K1_{typ}")
        a.vmq = []; a.lgq = []
        gen_type(a, typ)
    return kernel_wrap("k1_kernel", a.text(), 512, 256)
```

```python
from common import *
import struct, math
def f2u(x):
    return "0x%08x" % struct.unpack("<I", struct.pack("<f", x))[0]

P = dict(A_x=16, ckv=18, wq=20, wuk=22, wuv=24, wo=26, Bx=28, Lre=30, Lim=32, Bre=34, Bim=36, Cre=38, Cim=40,
         logdt=42, Dskip=44, out=46, dbg=48, ws=50)
S_WAVE, S_H, S_I = 3, 4, 5
S_T0, S_T1, S_T2, S_T3 = 6, 7, 8, 9
S_GRP, S_WQ, S_J, S_SW, S_ROW0, S_FIRST = 10, 11, 12, 13, 14, 15
SRD_X, SRD_WQ, SRD_KV, SRD_O, SRD_E = 52, 56, 60, 64, 68
S_FIN, S_TJ, S_TJ1, S_TJ2, S_LD, S_KVH, S_NOCHK, S_SKIP = 72, 73, 74, 75, 76, 77, 78, 79
S_M = 80
S_XL, S_XG, S_WB, S_ROWA, S_PAR, S_ROWB = 88, 89, 90, 91, 92, 93
S_THR, S_NEG = 94, 95
S_POST = 99

O0, S0, P0, Q0, NM0, FR0 = 0, 64, 96, 112, 144, 160
NF = 8
V_RD, V_CO, V_PS0, V_PS1, V_D, V_LANE16, V_COL = 224, 225, 228, 229, 230, 231, 232
V_M, V_L = 152, 154
TT = 234
V_TRW, V_XQ0, V_XQ1, V_XR = 251, 247, 248, 249
V_WQD = 253
XF0 = 64
WF0 = 192

LDS_QST = 131072
LDS_WR = 98304
CSCALE = (128 ** -0.5) * 1.4426950408889634
THR = 2.0 ** 60
NEGBIG = -1.0e30
DIAG = False
import os
STF = os.environ.get('STF2', 'sc1')
BM_POS = 0
PRIO = False
SPLIT = False
DMAM = int(os.environ.get('DMAM', '0'))

class Proxy:
    def __init__(self, t): self.__dict__['t'] = t
    def __getattr__(self, k): return getattr(self.__dict__['t'], k)
    def __setattr__(self, k, v):
        if k == 't': self.__dict__['t'] = v
        else: setattr(self.__dict__['t'], k, v)

def m16(d, a_, b_, c):
    return f"v_mfma_f32_16x16x32_bf16 {d}, {a_}, {b_}, {c}"

def gen_k2():
    A_ = Asm()
    a = Proxy(A_)
    def st_now(idx):
        if not DIAG: return
        a.e("s_memtime s[100:101]")
        a.e("s_waitcnt lgkmcnt(0)")
        a.e(f"v_writelane_b32 v255, s100, {idx}")
    a.e("s_cmp_ge_u32 s2, 256")
    a.e("s_cbranch_scc1 K2_exit")
    a.e("s_load_dwordx16 s[16:31], s[0:1], 0")
    a.e("s_load_dwordx16 s[32:47], s[0:1], 64")
    a.e("s_load_dwordx4 s[48:51], s[0:1], 128")
    a.e("v_lshrrev_b32 v1, 6, v0")
    a.e("v_and_b32 v233, 63, v0")
    a.e(f"v_readfirstlane_b32 s{S_WAVE}, v1")
    a.e(f"s_and_b32 s{S_H}, s2, 31")
    a.e(f"s_lshr_b32 s{S_I}, s2, 5")
    a.e(f"s_lshr_b32 s{S_GRP}, s{S_WAVE}, 2")
    a.e(f"s_and_b32 s{S_WQ}, s{S_WAVE}, 3")
    a.e(f"v_lshlrev_b32 v{V_LANE16}, 4, v233")
    a.e("s_waitcnt lgkmcnt(0)")
    rt_start(a, 100)
    st_now(0)
    if DIAG:
        a.e("s_memrealtime s[100:101]")
        a.e("s_waitcnt lgkmcnt(0)")
        a.e("v_writelane_b32 v255, s100, 60")
    srd(a, SRD_O, P['ws'], P['ws'] + 1, 64 << 20)
    srd_off(a, SRD_E, P['ws'], P['ws'] + 1, E32_OFF, 64 * 4096)

    srd(a, SRD_X, P['A_x'], P['A_x'] + 1, 2048 * 512 * 2)
    srd(a, SRD_WQ, P['wq'], P['wq'] + 1, 512 * 4096 * 2)
    srd(a, SRD_KV, P['ws'], P['ws'] + 1, 32 << 20)
    a.e(f"s_sub_u32 s{S_T0}, 15, s{S_I}")
    a.e(f"s_lshl_b32 s{S_T0}, s{S_T0}, 7")
    a.e(f"s_lshl_b32 s{S_T1}, s{S_WQ}, 5")
    a.e(f"s_add_u32 s{S_ROWA}, s{S_T0}, s{S_T1}")
    a.e(f"s_lshl_b32 s{S_T0}, s{S_I}, 7")
    a.e(f"s_add_u32 s{S_ROWB}, s{S_T0}, s{S_T1}")
    a.e(f"s_lshl_b32 s{S_T0}, s{S_I}, 1")
    a.e(f"s_add_u32 s{S_T1}, s{S_T0}, 1")
    a.e(f"s_cmp_eq_u32 s{S_GRP}, 0")
    a.e(f"s_cselect_b32 s{S_ROW0}, s{S_ROWA}, s{S_ROWB}")
    a.e(f"s_cselect_b32 s{S_SW}, 99, s{S_T1}")
    a.e(f"s_sub_u32 s{S_SKIP}, 15, s{S_T0}")
    a.e(f"s_lshl_b32 s{S_XL}, s{S_WAVE}, 13")
    a.e(f"s_cmp_lt_u32 s{S_WAVE}, 6")
    a.e(f"s_mov_b32 s{S_T1}, 32768")
    a.e(f"s_cselect_b32 s{S_T0}, 16384, s{S_T1}")
    a.e(f"s_add_u32 s{S_XL}, s{S_XL}, s{S_T0}")
    a.e(f"s_lshl_b32 s{S_XG}, s{S_ROW0}, 10")
    X = TT; Y = TT + 1; Z = TT + 2
    a.e(f"v_lshrrev_b32 v{X}, 3, v233")
    a.e(f"v_and_b32 v{Y}, 7, v233")
    for q, dst in enumerate([V_XQ0, V_XQ1]):
        a.e(f"v_add_u32 v{Z}, {8*q}, v{X}")
        a.e(f"v_bfe_u32 v{Z+1}, v{Z}, 1, 3")
        a.e(f"v_xor_b32 v{Z+1}, v{Z+1}, v{Y}")
        a.e(f"v_lshlrev_b32 v{Z+1}, 4, v{Z+1}")
        a.e(f"v_lshl_add_u32 v{Z+1}, v{Z}, 10, v{Z+1}")
        a.e(f"v_subrev_u32 v{dst}, {1024*q}, v{Z+1}")
    a.e(f"v_and_b32 v{X}, 15, v233")
    a.e(f"v_lshlrev_b32 v{Y}, 7, v{X}")
    a.e(f"v_add_u32 v{Y}, s{S_XL}, v{Y}")
    a.e(f"v_bfe_u32 v{Z}, v233, 1, 3")
    a.e(f"v_lshrrev_b32 v{Z+1}, 4, v233")
    a.e(f"v_xor_b32 v{Z}, v{Z}, v{Z+1}")
    a.e(f"v_lshl_add_u32 v{V_XR}, v{Z}, 4, v{Y}")
    a.e(f"v_xor_b32 v{V_XR+1}, 64, v{V_XR}")
    a.e(f"v_lshlrev_b32 v{Z+1}, 2, v{Z+1}")
    a.e(f"v_sub_u32 v{V_COL}, v{X}, v{Z+1}")
    a.e(f"v_lshlrev_b32 v{V_CO}, 4, v{X}")
    a.e(f"v_bfe_u32 v{Y}, v233, 4, 1")
    a.e(f"v_lshl_add_u32 v{V_CO}, v{Y}, 9, v{V_CO}")
    a.e(f"v_lshrrev_b32 v{Y}, 5, v233")
    a.e(f"v_lshl_add_u32 v{V_CO}, v{Y}, 10, v{V_CO}")
    WQD = [V_WQD, V_WQD + 1]
    a.e(f"v_lshlrev_b32 v{Y}, 1, v{Y}")
    a.e(f"v_and_b32 v{X}, 3, v233")
    a.e(f"v_xor_b32 v{Y}, v{X}, v{Y}")
    a.e(f"v_lshlrev_b32 v{WQD[0]}, 4, v{Y}")
    a.e(f"v_lshrrev_b32 v{X}, 2, v233")
    a.e(f"v_lshl_add_u32 v{WQD[0]}, v{X}, 13, v{WQD[0]}")
    a.e(f"v_add_u32 v{WQD[1]}, {16*8192 - 1024}, v{WQD[0]}")
    a.e(f"s_lshl_b32 s{S_WB}, s{S_H}, 8")
    a.e(f"s_lshr_b32 s{S_T0}, s{S_WAVE}, 1")
    a.e(f"s_lshl_b32 s{S_T0}, s{S_T0}, 6")
    a.e(f"s_add_u32 s{S_WB}, s{S_WB}, s{S_T0}")
    a.e(f"s_and_b32 s{S_T0}, s{S_WAVE}, 1")
    a.e(f"s_lshl_b32 s{S_T0}, s{S_T0}, 18")
    a.e(f"s_add_u32 s{S_WB}, s{S_WB}, s{S_T0}")
    a.e(f"v_lshrrev_b32 v{X}, 4, v233")
    a.e(f"v_lshlrev_b32 v{V_TRW}, 9, v{X}")
    a.e(f"v_bfe_u32 v{Y}, v233, 2, 2")
    a.e(f"v_lshl_add_u32 v{V_TRW}, v{Y}, 6, v{V_TRW}")
    a.e(f"v_and_b32 v{Y}, 3, v233")
    a.e(f"v_lshl_add_u32 v{V_TRW}, v{Y}, 3, v{V_TRW}")
    a.e(f"v_and_b32 v{X}, 1, v{X}")
    a.e(f"v_lshl_add_u32 v{V_TRW}, v{X}, 5, v{V_TRW}")
    a.e(f"v_add_u32 v{V_TRW}, {LDS_WR}, v{V_TRW}")
    a.e(f"v_xor_b32 v{V_TRW+1}, 32, v{V_TRW}")
    a.e(f"s_lshl_b32 s{S_T0}, s{S_GRP}, 16")
    a.e(f"s_lshl_b32 s{S_T1}, s{S_WQ}, 12")
    a.e(f"s_add_u32 s{S_LD}, s{S_T0}, s{S_T1}")
    a.e(f"s_lshl_b32 s{S_KVH}, s{S_H}, 19")
    a.e(f"s_add_u32 s{S_KVH}, s{S_KVH}, s{S_T1}")
    a.e(f"v_add_u32 v{V_RD}, s{S_T0}, v{V_LANE16}")
    a.e(f"s_mov_b32 s{S_THR}, {f2u(THR)}")
    a.e(f"s_mov_b32 s{S_NEG}, {f2u(NEGBIG)}")

    def w_dma(n):
        a.e(f"s_lshl_b32 s{S_T0}, s{S_WAVE}, 11")
        a.e(f"s_add_u32 m0, s{S_T0}, {LDS_WR + (n % 3) * 16384}")
        a.e(f"s_add_u32 s{S_T0}, s{S_WB}, {n * 524288}")
        for q in range(2):
            a.vm(f"buffer_load_dwordx4 v{WQD[q]}, s[{SRD_WQ}:{SRD_WQ+3}], s{S_T0} offen offset:{1024*q} lds", ('w', n))
    def x_dma(c):
        for qq in range(2):
            a.e(f"s_add_u32 m0, s{S_XL}, {(c & 1) * 4096 + qq * 2048}")
            a.e(f"s_add_u32 s{S_T0}, s{S_XG}, {c * 128 + qq * 16384}")
            a.vm(f"buffer_load_dwordx4 v{V_XQ0}, s[{SRD_X}:{SRD_X+3}], s{S_T0} offen lds", ('x', c))
            a.vm(f"buffer_load_dwordx4 v{V_XQ1}, s[{SRD_X}:{SRD_X+3}], s{S_T0} offen offset:1024 lds", ('x', c))
    def x_read(c):
        a.wait(vm=('x', c))
        for up in range(2):
            for qt in range(2):
                r = XF0 + ((c & 3) * 4 + up * 2 + qt) * 4
                a.ds(f"ds_read_b128 v[{r}:{r+3}], v{V_XR+up} offset:{(c & 1) * 4096 + qt * 2048}", ('xr', c))
    def kv_dma(which, s_tile, buf_expr_off, tag):
        a.e(f"s_lshl_b32 s{S_T0}, s{s_tile}, 14")
        a.e(f"s_add_u32 s{S_T0}, s{S_T0}, s{S_KVH}")
        if which == 'V': a.e(f"s_add_u32 s{S_T0}, s{S_T0}, {VF_OFF}")
        for q in range(4):
            a.vm(f"buffer_load_dwordx4 v{V_LANE16}, s[{SRD_KV}:{SRD_KV+3}], s{S_T0} offen offset:{1024*q} lds", tag)

    SC, SG = 96, 97
    E0 = 128
    B0 = 160
    CL, CL8, CL32, CLS, CCO = 176, 178, 180, 182, 184
    VA, VB_, VSUB, VCH = 186, 187, 188, 189
    S_HS = 98
    def scan_loads():
        a.e(f"s_lshl_b32 s{S_T2}, s2, 3")
        a.e(f"s_add_u32 s{S_T2}, s{S_T2}, s{S_WAVE}")
        a.e(f"s_lshr_b32 s{SC}, s{S_T2}, 5")
        a.e(f"s_and_b32 s{SG}, s{S_T2}, 31")
        a.e(f"v_and_b32 v{VCH}, 15, v233")
        a.e(f"v_lshrrev_b32 v{VSUB}, 4, v233")
        a.e(f"s_lshl_b32 s{S_T2}, s{SG}, 7")
        a.e(f"v_lshlrev_b32 v{VA}, 3, v{VCH}")
        a.e(f"v_add_u32 v{VA}, s{S_T2}, v{VA}")
        a.e(f"s_mov_b32 s{S_T3}, {TAB_OFF}")
        a.e(f"s_add_u32 s{S_T2}, s{S_T3}, {2*4096}")
        a.vm(f"buffer_load_dwordx2 v[{CL32}:{CL32+1}], v{VA}, s[{SRD_O}:{SRD_O+3}], s{S_T2} offen", 'sc')
        a.e(f"v_lshlrev_b32 v{VB_}, 16, v{VSUB}")
        a.e(f"v_sub_u32 v{VB_}, v{VA}, v{VB_}")
        a.e(f"s_lshl_b32 s{S_T2}, s{SC}, 12")
        a.e(f"s_sub_u32 s{S_T2}, s{S_T2}, {16*4096}")
        a.e(f"v_add_u32 v{VB_}, s{S_T2}, v{VB_}")
        for i in range(16):
            a.vm(f"buffer_load_dwordx2 v[{E0+2*i}:{E0+2*i+1}], v{VB_}, s[{SRD_E}:{SRD_E+3}], 0 offen", ('e', i))
            if i < 15: a.e(f"v_add_u32 v{VB_}, 0x1000, v{VB_}")
        a.vm(f"buffer_load_dwordx2 v[{CL}:{CL+1}], v{VA}, s[{SRD_O}:{SRD_O+3}], s{S_T3} offen", 'sc2')
        a.e(f"s_add_u32 s{S_T2}, s{S_T3}, 4096")
        a.vm(f"buffer_load_dwordx2 v[{CL8}:{CL8+1}], v{VA}, s[{SRD_O}:{SRD_O+3}], s{S_T2} offen", 'sc2')
        a.e(f"s_add_u32 s{S_T2}, s{S_T3}, {6*4096}")
        a.vm(f"buffer_load_dwordx2 v[{CCO}:{CCO+1}], v{VA}, s[{SRD_O}:{SRD_O+3}], s{S_T2} offen", 'sc2')
        a.e(f"v_lshl_add_u32 v{VB_}, v{VSUB}, 12, v{VA}")
        a.e(f"s_add_u32 s{S_T2}, s{S_T3}, {2*4096}")
        a.vm(f"buffer_load_dwordx2 v[{CLS}:{CLS+1}], v{VB_}, s[{SRD_O}:{SRD_O+3}], s{S_T2} offen", 'sc2')
        a.e(f"s_lshl_b32 s{S_T2}, s{SC}, 17")
        a.e(f"s_lshr_b32 s{S_T3}, s{SG}, 1")
        a.e(f"s_lshl_b32 s{S_T3}, s{S_T3}, 13")
        a.e(f"s_add_u32 s{S_T2}, s{S_T2}, s{S_T3}")
        a.e(f"s_and_b32 s{S_T3}, s{SG}, 1")
        a.e(f"s_lshl_b32 s{S_T3}, s{S_T3}, 8")
        a.e(f"s_add_u32 s{S_T2}, s{S_T2}, s{S_T3}")
        a.e(f"s_add_u32 s{S_T2}, s{S_T2}, {BU_OFF}")
        a.e(f"s_add_u32 s{S_T3}, s{S_T2}, 4096")
        a.e(f"v_lshlrev_b32 v{VB_}, 4, v{VCH}")
        a.e(f"v_lshl_add_u32 v{VB_}, v{VSUB}, 10, v{VB_}")
        for part in range(2):
            for hf in range(2):
                r = B0 + part * 8 + hf * 4
                a.vm(f"buffer_load_dwordx4 v[{r}:{r+3}], v{VB_}, s[{SRD_O}:{SRD_O+3}], s{S_T2 if part == 0 else S_T3} offen offset:{512*hf}", 'bu')
        a.e(f"s_lshl_b32 s{S_HS}, s{SC}, 6")
        a.e(f"s_lshl_b32 s{S_T2}, s{SG}, 1")
        a.e(f"s_add_u32 s{S_HS}, s{S_HS}, s{S_T2}")
        a.e(f"s_lshl_b32 s{S_HS}, s{S_HS}, 10")
        a.e(f"s_add_u32 s{S_HS}, s{S_HS}, {HF_OFF}")


    w_dma(0); x_dma(0)
    a.e("s_barrier")
    x_dma(1); w_dma(1); w_dma(2)
    a.e(f"s_mov_b32 s{S_TJ}, 0")

    AC, T0_, T1_ = 190, TT + 4, TT + 6
    scan = []
    def S(f): scan.append(f)
    def cfma(d, x, l, b_re, b_im, t):
        a.e(f"v_fma_f32 v{t}, v{x}, v{l}, v{b_re}")
        a.e(f"v_fma_f32 v{t+1}, v{x}, v{l+1}, v{b_im}")
        a.e(f"v_fma_f32 v{d}, -v{x+1}, v{l+1}, v{t}")
        a.e(f"v_fma_f32 v{d+1}, v{x+1}, v{l}, v{t+1}")
    def cmul(d, x, l, t):
        a.e(f"v_mul_f32 v{t}, v{x}, v{l}")
        a.e(f"v_mul_f32 v{t+1}, v{x}, v{l+1}")
        a.e(f"v_fma_f32 v{d}, -v{x+1}, v{l+1}, v{t}")
        a.e(f"v_fma_f32 v{d+1}, v{x+1}, v{l}, v{t+1}")
    def f():
        a.e(f"v_cmp_lt_u32 s[{S_M}:{S_M+1}], 0, v{VSUB}")
        a.e(f"v_cmp_lt_u32 s[{S_M+2}:{S_M+3}], 1, v{VSUB}")
        a.e(f"v_cmp_lt_u32 s[{S_M+4}:{S_M+5}], 2, v{VSUB}")
        a.wait(vm='bu')
    S(f)
    S(lambda: cfma(AC, E0, CL32, E0 + 2, E0 + 3, T0_))
    for i in range(2, 16):
        S(lambda i=i: cfma(AC, AC, CL32, E0 + 2 * i, E0 + 2 * i + 1, T0_))
    def f():
        a.e(f"v_cndmask_b32 v{CLS}, 1.0, v{CLS}, s[{S_M}:{S_M+1}]")
        a.e(f"v_cndmask_b32 v{CLS+1}, 0, v{CLS+1}, s[{S_M}:{S_M+1}]")
    S(f)
    S(lambda: cmul(AC, AC, CLS, T0_))
    for sw in ("v_permlane32_swap_b32", "v_permlane16_swap_b32"):
        def f(sw=sw):
            a.e(f"v_mov_b32 v{T0_}, v{AC}")
            a.e(f"v_mov_b32 v{T0_+1}, v{AC+1}")
            a.e("s_nop 1")
            a.e(f"{sw} v{AC}, v{T0_}")
            a.e(f"{sw} v{AC+1}, v{T0_+1}")
        S(f)
        def f():
            a.e(f"v_add_f32 v{AC}, v{AC}, v{T0_}")
            a.e(f"v_add_f32 v{AC+1}, v{AC+1}, v{T0_+1}")
        S(f)
    def bu(k, part): return B0 + part * 8 + k
    EN = E0
    def f():
        a.e(f"v_fma_f32 v{T0_}, v{bu(0,0)}, v{CL}, v{bu(1,0)}")
        a.e(f"v_fma_f32 v{T0_+1}, v{bu(0,0)}, v{CL+1}, v{bu(1,1)}")
        a.e(f"v_fma_f32 v{EN}, -v{bu(0,1)}, v{CL+1}, v{T0_}")
        a.e(f"v_fma_f32 v{EN+1}, v{bu(0,1)}, v{CL}, v{T0_+1}")
    S(f)
    for k in range(2, 8):
        S(lambda k=k: cfma(EN, EN, CL, bu(k, 0), bu(k, 1), T0_))
    def f():
        a.e(f"v_lshlrev_b32 v{VA}, 2, v{VCH}")
        for jp in range(3):
            if jp: a.e(f"v_add_u32 v{VA}, 64, v{VA}")
            a.ds(f"ds_bpermute_b32 v{EN+2+2*jp}, v{VA}, v{EN}", 'bp')
            a.ds(f"ds_bpermute_b32 v{EN+3+2*jp}, v{VA}, v{EN+1}", 'bp')
    S(f)
    def f():
        a.e(f"v_bfe_u32 v{VB_}, v{VCH}, 2, 1")
        a.e(f"v_lshlrev_b32 v{VB_}, 10, v{VB_}")
        a.e(f"v_bfe_u32 v{T1_}, v{VCH}, 3, 1")
        a.e(f"v_lshl_add_u32 v{VB_}, v{T1_}, 9, v{VB_}")
    S(f)
    def f():
        a.e(f"v_and_b32 v{T1_}, 3, v{VCH}")
        a.e(f"v_lshl_add_u32 v{VB_}, v{T1_}, 2, v{VB_}")
        a.e(f"v_lshl_add_u32 v{VB_}, v{VSUB}, 7, v{VB_}")
    S(f)
    for jp in range(3):
        def f(jp=jp):
            a.wait(lg='bp')
            cfma(T1_, AC, CL8, EN + 2 + 2 * jp, EN + 3 + 2 * jp, T0_)
        S(f)
        def f(jp=jp):
            a.e(f"v_cndmask_b32 v{AC}, v{AC}, v{T1_}, s[{S_M+2*jp}:{S_M+2*jp+1}]")
            a.e(f"v_cndmask_b32 v{AC+1}, v{AC+1}, v{T1_+1}, s[{S_M+2*jp}:{S_M+2*jp+1}]")
        S(f)
    for k in range(8):
        S(lambda k=k: cfma(AC, AC, CL, bu(k, 0), bu(k, 1), T0_))
        S(lambda k=k: cmul(EN + 8 + 2 * (k & 3), AC, CCO, T0_))
        def f(k=k):
            h = EN + 8 + 2 * (k & 3)
            a.e(f"v_cvt_pk_bf16_f32 v{EN+16+k}, v{h}, -v{h+1}")
            a.vm(f"buffer_store_dword v{EN+16+k}, v{VB_}, s[{SRD_O}:{SRD_O+3}], s{S_HS} offen offset:{16*k}", 'hs')
        S(f)

    st_now(1)
    x_read(0)
    a.wait(lg=('xr', 0)); x_dma(2)
    x_read(1)
    a.wait(lg=('xr', 1)); x_dma(3)
    wfr = [(n, up, un, t) for n in range(8) for up in range(2) for un in range(4) for t in range(2)]
    def w_issue(f):
        n, up, un, t = wfr[f]
        r = WF0 + (f % NF) * 4
        off = (n % 3) * 16384 + un * 4096 + up * 2048
        a.ds(f"ds_read_b64_tr_b16 v[{r}:{r+1}], v{V_TRW+t} offset:{off}", ('wf', f))
        a.ds(f"ds_read_b64_tr_b16 v[{r+2}:{r+3}], v{V_TRW+t} offset:{off+256}", ('wf', f))
    sl = Rec(); a.t = sl; scan_loads(); a.t = A_
    sc = Rec(); a.t = sc
    for it in scan: it()
    a.t = A_
    scan[:] = []
    a.wait(vm=('w', 0))
    a.e("s_barrier")
    fn = 0; landed = 0
    for f, (n, up, un, t) in enumerate(wfr):
        fi = f & 15
        if fi == 0:
            if DIAG: st_now(48 + n); a.lgq = []
            if n + 1 < 8: a.wait(vm=('w', n + 1))
            a.e("s_barrier")
            landed = n + 1
            if n >= 1 and n + 2 < 8: w_dma(n + 2)
            if f == 0:
                while fn < NF: w_issue(fn); fn += 1
        a.wait(lg=('wf', f))
        if fi == 0: a.wait(lg=('xr', n))
        for qt in range(2):
            D = vr(O0 + (qt * 8 + 2 * un + t) * 4, 4)
            a.e(m16(D, vr(WF0 + (f % NF) * 4, 4), vr(XF0 + ((n & 3) * 4 + up * 2 + qt) * 4, 4), "0" if (n == 0 and up == 0) else D))
        if fn < len(wfr) and fn - NF <= f and wfr[fn][0] <= landed:
            w_issue(fn); fn += 1
        if fi == 5 and n + 2 < 8: x_read(n + 2)
        if fi == 10 and n + 4 < 8:
            a.wait(lg=('xr', n + 2)); x_dma(n + 4)
        if f == 52:
            a.e(f"s_mov_b32 m0, s{S_LD}")
            kv_dma('K', S_TJ, 0, 'k0')
        if len(sl):
            for _ in range(2):
                if len(sl): sl.pop(A_)
        elif f >= 56:
            for _ in range(5):
                if len(sc): sc.pop(A_)
    assert not len(sc), len(sc)
    a.wait(vm='k0')
    a.e("s_barrier")
    st_now(2)
    if DIAG:
        a.e("s_memrealtime s[100:101]")
        a.e("s_waitcnt lgkmcnt(0)")
        a.e("v_writelane_b32 v255, s100, 61")
    if DIAG: a.e("s_mov_b32 s100, 4"); a.e("s_mov_b32 s0, 0")
    a.e(f"s_mov_b32 s{S_TJ1}, 1")
    a.e(f"s_add_u32 m0, s{S_LD}, 32768")
    kv_dma('K', S_TJ1, 0, 'st')
    a.e(f"s_add_u32 m0, s{S_LD}, {32768 + 16384}")
    kv_dma('V', S_TJ, 0, 'st')
    a.e(f"s_mov_b32 s{S_T1}, {f2u(CSCALE)}")
    for r in range(64):
        a.e(f"v_mul_f32 v{O0+r}, s{S_T1}, v{O0+r}")
    for k in range(32):
        a.e(f"v_cvt_pk_bf16_f32 v{Q0+k}, v{O0+2*k}, v{O0+2*k+1}")
    for r in range(64): a.e(f"v_mov_b32 v{O0+r}, 0")
    for r in range(12): a.e(f"v_mov_b32 v{NM0+r}, 0")
    a.e(f"s_mov_b32 s{S_J}, 0")
    a.e(f"s_mov_b32 s{S_FIRST}, 1")
    a.e(f"s_mov_b32 s{S_FIN}, 0")
    a.e(f"s_mov_b32 s{S_PAR}, 0")
    a.e(f"s_mov_b32 s{S_NOCHK}, 0")
    a.e(f"s_add_u32 s{S_T0}, s{S_SKIP}, 2")
    a.e(f"s_cmp_lt_u32 s{S_SW}, 2")
    a.e(f"s_cselect_b32 s{S_TJ2}, s{S_T0}, 2")
    a.e(f"s_lshl_b32 s{S_T0}, s{S_WQ}, 13")
    a.e(f"s_add_u32 s{S_T0}, s{S_T0}, {LDS_QST}")
    a.e(f"v_add_u32 v{V_XR}, s{S_T0}, v{V_LANE16}")
    a.e(f"s_cmp_eq_u32 s{S_GRP}, 0")
    a.e("s_cbranch_scc0 K2_qk0")
    for k in range(8):
        a.e(f"ds_write_b128 v{V_XR}, v[{Q0+4*k}:{Q0+4*k+3}] offset:{1024*k}")
    a.e("s_waitcnt lgkmcnt(0)")
    a.e("s_barrier")
    a.label("K2_qk0")
    a.lgq = []

    def frag_list(qk, pv):
        fl = []
        if qk: fl += [('K', kt, ds) for kt in range(4) for ds in range(4)]
        if pv: fl += [('V', T, dt) for T in range(2) for dt in range(8)]
        return fl
    def f_issue(fl, i):
        kind, x, y = fl[i]
        r = FR0 + (i % NF) * 4
        off = (x * 4 + y) * 1024 if kind == 'K' else 16384 + (x * 8 + y) * 1024
        a.ds(f"ds_read_b128 v[{r}:{r+3}], v{V_RD} offset:{off}", ('f', i))
    S1 = [S0 + 16, 192]
    def m_phase(fl, bar_after, pdst, side=None, after_qk=None):
        nk = sum(1 for f in fl if f[0] == 'K')
        for i, (kind, x, y) in enumerate(fl):
            if i == bar_after:
                a.e("s_barrier")
                if DIAG: a.e("s_memtime s[0:1]")
            if i == nk and after_qk:
                while side is not None and len(side): side.pop(A_)
                after_qk()
            a.wait(lg=('f', i))
            fr = vr(FR0 + (i % NF) * 4, 4)
            for qt in range(2):
                if kind == 'K':
                    D = vr((S0 if qt == 0 else S1[pdst]) + x * 4, 4)
                    a.e(m16(D, fr, vr(Q0 + (qt * 4 + y) * 4, 4), vr(NM0 + qt * 4, 4) if y == 0 else D))
                else:
                    D = vr(O0 + (qt * 8 + y) * 4, 4)
                    a.e(m16(D, fr, vr(P0 + (qt * 2 + x) * 4, 4), D))
                if side is not None and len(side) and (qt == 0 or (i & 1)):
                    side.pop(A_)
            if i + NF < len(fl): f_issue(fl, i + NF)

    fl = frag_list(True, False)
    for i in range(NF): f_issue(fl, i)
    m_phase(fl, -1, 0)

    def store_ctx(srow, tag):
        a.e(f"s_lshl_b32 s{S_T0}, s{srow}, 13")
        a.e(f"s_lshl_b32 s{S_T1}, s{S_H}, 13")
        a.e(f"s_add_u32 s{S_T0}, s{S_T0}, s{S_T1}")
        a.e(f"s_add_u32 s{S_T0}, s{S_T0}, {CTX_OFF}")
        a.e(f"s_add_u32 s{S_T1}, s{S_T0}, 4096")
        for f in range(8):
            qt, Pp = f >> 2, f & 3
            t = P0 + (f % 4) * 4
            for k in range(4):
                a.e(f"v_cvt_pk_bf16_f32 v{t+k}, v{O0+f*8+2*k}, v{O0+f*8+2*k+1}")
            a.e(f"buffer_store_dwordx4 v[{t}:{t+3}], v{V_CO}, s[{SRD_O}:{SRD_O+3}], s{S_T0 if Pp < 2 else S_T1} offen offset:{2048*(Pp&1) + 256*qt} {STF}")

    def exp_block(q, qt, sb, dma):
        tb = TT if qt == 0 else TT + 8 - 8 + 0
        tmp = [TT, TT + 2, TT + 4, TT + 6] if qt == 0 else [208, 210, 212, 214]
        ps = V_PS0 if qt == 0 else V_PS1
        prs = [(sb + kt * 4 + 2 * hh, P0 + (qt * 2 + (kt >> 1)) * 4 + (kt & 1) * 2 + hh) for kt in range(4) for hh in range(2)]
        def consume(n):
            t = tmp[n % 4]
            if n == 0:
                q.e(f"v_add_f32 v{ps}, v{t}, v{t+1}")
            else:
                q.e(f"v_add_f32 v{ps}, v{ps}, v{t}")
                q.e(f"v_add_f32 v{ps}, v{ps}, v{t+1}")
            q.e(f"v_cvt_pk_bf16_f32 v{prs[n][1]}, v{t}, v{t+1}")
        for n, (sa, pd) in enumerate(prs):
            t = tmp[n % 4]
            if dma is True:
                if n in (0, 4): q.e(f"s_add_u32 m0, s{S_XG}, {0 if n == 0 else 16384}")
            elif dma and n == 0: q.e(f"s_add_u32 m0, s{S_XG}, {0 if dma == 1 else 16384}")
            q.e(f"v_exp_f32 v{t}, v{sa}")
            if dma is True: q.e(f"buffer_load_dwordx4 v{V_LANE16}, s[{SRD_KV}:{SRD_KV+3}], s{S_T2 if n < 4 else S_T3} offen offset:{1024*(n & 3)} lds")
            elif dma and not (n & 1): q.e(f"buffer_load_dwordx4 v{V_LANE16}, s[{SRD_KV}:{SRD_KV+3}], s{S_T2 if dma == 1 else S_T3} offen offset:{1024*(n >> 1)} lds")
            q.e(f"v_exp_f32 v{t+1}, v{sa+1}")
            if n >= 2: consume(n - 2)
        consume(6); consume(7)

    def scal_next():
        a.e(f"s_mov_b32 s{S_TJ}, s{S_TJ1}")
        a.e(f"s_mov_b32 s{S_TJ1}, s{S_TJ2}")
        a.e(f"s_add_u32 s{S_T0}, s{S_J}, 3")
        a.e(f"s_add_u32 s{S_T1}, s{S_T0}, s{S_SKIP}")
        a.e(f"s_cmp_gt_u32 s{S_T0}, s{S_SW}")
        a.e(f"s_cselect_b32 s{S_TJ2}, s{S_T1}, s{S_T0}")
        a.e(f"s_min_u32 s{S_TJ2}, s{S_TJ2}, 31")
        a.e(f"s_xor_b32 s{S_PAR}, s{S_PAR}, 0x8000")
        a.e(f"s_add_u32 s{S_J}, s{S_J}, 1")
        scal_dma()
    def scal_dma():
        a.e(f"s_lshl_b32 s{S_T2}, s{S_TJ2}, 14")
        a.e(f"s_add_u32 s{S_T2}, s{S_T2}, s{S_KVH}")
        a.e(f"s_lshl_b32 s{S_T3}, s{S_TJ1}, 14")
        a.e(f"s_add_u32 s{S_T3}, s{S_T3}, s{S_KVH}")
        a.e(f"s_add_u32 s{S_T3}, s{S_T3}, {VF_OFF}")
        a.e(f"s_add_u32 s{S_XG}, s{S_LD}, s{S_PAR}")
        a.e(f"s_lshl_b32 s{S_XL}, s{S_TJ}, 6")
        a.e(f"s_add_u32 s{S_WB}, s{S_XL}, 63")
        a.e(f"s_cmp_gt_u32 s{S_WB}, s{S_ROW0}")
        a.e(f"s_cselect_b32 s{S_WB}, 1, s{S_FIRST}")
        a.e(f"s_cmp_eq_u32 s{S_J}, s{S_SW}")
        a.e(f"s_cselect_b32 s{S_POST}, 1, 0")
        a.e(f"s_cmp_eq_u32 s{S_J}, 15")
        a.e(f"s_cselect_b32 s{S_POST}, 1, s{S_POST}")

    def body(sfx, p, last):
        a.e("s_waitcnt vmcnt(0)" if not last else "s_waitcnt vmcnt(3)")
        a.e("s_barrier")
        if DIAG:
            a.e("s_memtime s[96:97]")
            a.e("s_waitcnt lgkmcnt(0)")
            a.e("s_sub_u32 m0, s100, 1")
            a.e("v_writelane_b32 v255, s0, m0")
            a.e("s_mov_b32 m0, s100")
            a.e("v_writelane_b32 v255, s96, m0")
            a.e("s_add_u32 s100, s100, 2")
            a.e(f"s_add_u32 m0, s{S_J}, 39")
            a.e("s_min_u32 m0, m0, 47")
            a.e("v_writelane_b32 v255, s86, m0")
        fl = frag_list(not last, True)
        a.lgq = []
        for i in range(NF): f_issue(fl, i)
        a.e(f"s_cmp_lg_u32 s{S_WB}, 0")
        a.e(f"s_cbranch_scc1 K2_spec{sfx}")
        a.label(f"K2_exp{sfx}")
        exp_block(a, 0, S0, (not last) and DMAM < 2 and (True if SPLIT else 1))
        a.e(f"v_cmp_ngt_f32 vcc, s{S_THR}, v{V_PS0}")
        a.e(f"s_cbranch_vccnz K2_chk{sfx}")
        a.label(f"K2_ok{sfx}")
        a.e(f"v_add_f32 v{V_L}, v{V_L}, v{V_PS0}")
        if not SPLIT:
            exp_block(a, 1, S1[p], (not last) and DMAM < 1 and 2)
            a.e(f"v_cmp_ngt_f32 vcc, s{S_THR}, v{V_PS1}")
            a.e(f"s_cbranch_vccnz K2_slow1{sfx}")
            a.label(f"K2_ok1{sfx}")
            a.e(f"v_add_f32 v{V_L+1}, v{V_L+1}, v{V_PS1}")
        if not last:
            a.e(f"s_cmp_lg_u32 s{S_POST}, 0")
            a.e(f"s_cbranch_scc1 K2_post{sfx}")
            a.label(f"K2_postret{sfx}")
        if DIAG: a.e("s_memtime s[86:87]")
        side = Rec()
        if not last and DMAM:
            for part in ([1, 2] if DMAM == 2 else [2]):
                side.e(f"s_add_u32 m0, s{S_XG}, {0 if part == 1 else 16384}")
                for q4 in range(4):
                    side.e(f"buffer_load_dwordx4 v{V_LANE16}, s[{SRD_KV}:{SRD_KV+3}], s{S_T2 if part == 1 else S_T3} offen offset:{1024*q4} lds")
        if SPLIT: exp_block(side, 1, S1[p], False)
        def after_qk():
            if SPLIT:
                a.e(f"v_cmp_ngt_f32 vcc, s{S_THR}, v{V_PS1}")
                a.e(f"s_cbranch_vccnz K2_slow1{sfx}")
                a.label(f"K2_ok1{sfx}")
                a.e(f"v_add_f32 v{V_L+1}, v{V_L+1}, v{V_PS1}")
            if not last:
                scal_next()
        m_phase(fl, 0, p ^ 1, side, after_qk)
        if not last: a.e(f"v_xor_b32 v{V_RD}, 0x8000, v{V_RD}")

    def xlane(op, r0, t0, n=2):
        for sw in ("v_permlane32_swap_b32", "v_permlane16_swap_b32"):
            for k in range(n): a.e(f"v_mov_b32 v{t0+k}, v{r0+k}")
            a.e("s_nop 1")
            for k in range(n): a.e(f"{sw} v{r0+k}, v{t0+k}")
            a.e("s_nop 1")
            for k in range(n): a.e(f"{op} v{r0+k}, v{r0+k}, v{t0+k}")
    def rowmax(d, b):
        a.e(f"v_max3_f32 v{d}, v{b}, v{b+1}, v{b+2}")
        for r in range(3, 15, 2): a.e(f"v_max3_f32 v{d}, v{d}, v{b+r}, v{b+r+1}")
        a.e(f"v_max_f32 v{d}, v{d}, v{b+15}")
    def outofline(sfx, p, last):
        SB = [S0, S1[p]]
        a.label(f"K2_spec{sfx}")
        a.e(f"s_cmp_eq_u32 s{S_FIN}, 0")
        a.e(f"s_cbranch_scc1 K2_nofin{sfx}")
        xlane("v_add_f32", V_L, TT)
        a.e(f"v_rcp_f32 v{TT}, v{V_L}")
        a.e(f"v_rcp_f32 v{TT+1}, v{V_L+1}")
        a.e(f"v_mov_b32 v{V_L}, 0")
        a.e(f"v_mov_b32 v{V_L+1}, 0")
        a.e(f"s_mov_b32 s{S_FIN}, 0")
        for r in range(64): a.e(f"v_mul_f32 v{O0+r}, v{O0+r}, v{TT + (r >> 5)}")
        store_ctx(S_ROWB, 'c')
        for r in range(64): a.e(f"v_mov_b32 v{O0+r}, 0")
        a.label(f"K2_nofin{sfx}")
        a.e(f"s_add_u32 s{S_T1}, s{S_XL}, 63")
        a.e(f"s_cmp_gt_u32 s{S_T1}, s{S_ROW0}")
        a.e(f"s_cbranch_scc0 K2_nomask{sfx}")
        a.e(f"s_sub_u32 s{S_T1}, s{S_ROW0}, s{S_XL}")
        a.e(f"v_add_u32 v{V_D}, s{S_T1}, v{V_COL}")
        a.e(f"v_mov_b32 v{TT+11}, s{S_NEG}")
        for g in range(8):
            qt, kt = g >> 2, g & 3
            for k in range(4):
                a.e(f"v_cmp_le_i32 s[{S_M+2*k}:{S_M+2*k+1}], {16*kt + k - 16*qt}, v{V_D}")
            for k in range(4):
                r = SB[qt] + kt * 4 + k
                a.e(f"v_cndmask_b32 v{r}, v{TT+11}, v{r}, s[{S_M+2*k}:{S_M+2*k+1}]")
        a.label(f"K2_nomask{sfx}")
        a.e(f"s_cmp_eq_u32 s{S_FIRST}, 0")
        a.e(f"s_cbranch_scc1 K2_exp{sfx}")
        rowmax(TT, SB[0]); rowmax(TT + 1, SB[1])
        xlane("v_max_f32", TT, TT + 2)
        for qt in range(2):
            a.e(f"v_max_f32 v{TT+qt}, {f2u(-1.0e20)}, v{TT+qt}")
            a.e(f"v_add_f32 v{V_M+qt}, v{V_M+qt}, v{TT+qt}")
            a.e(f"v_sub_f32 v{NM0+4*qt}, 0, v{V_M+qt}")
            for r in range(1, 4): a.e(f"v_mov_b32 v{NM0+4*qt+r}, v{NM0+4*qt}")
            for r in range(16): a.e(f"v_sub_f32 v{SB[qt]+r}, v{SB[qt]+r}, v{TT+qt}")
        a.e(f"s_mov_b32 s{S_FIRST}, 0")
        a.e(f"s_branch K2_exp{sfx}")
        a.label(f"K2_chk{sfx}")
        a.e(f"s_cmp_lg_u32 s{S_NOCHK}, 0")
        a.e(f"s_mov_b32 s{S_NOCHK}, 0")
        a.e(f"s_cbranch_scc1 K2_ok{sfx}")
        rowmax(TT, S0)
        xlane("v_max_f32", TT, TT + 2, 1)
        a.e(f"v_max_f32 v{TT}, 0, v{TT}")
        a.e(f"v_exp_f32 v{TT+2}, -v{TT}")
        a.e(f"v_add_f32 v{V_M}, v{V_M}, v{TT}")
        a.e(f"v_mul_f32 v{V_L}, v{V_L}, v{TT+2}")
        for r in range(32): a.e(f"v_mul_f32 v{O0+r}, v{O0+r}, v{TT+2}")
        a.e(f"v_sub_f32 v{NM0}, 0, v{V_M}")
        for r in range(1, 4): a.e(f"v_mov_b32 v{NM0+r}, v{NM0}")
        for r in range(16): a.e(f"v_sub_f32 v{S0+r}, v{S0+r}, v{TT}")
        exp_block(a, 0, S0, False)
        a.e(f"s_branch K2_ok{sfx}")
        a.label(f"K2_slow1{sfx}")
        rowmax(TT, S1[p])
        xlane("v_max_f32", TT, TT + 2, 1)
        a.e(f"v_max_f32 v{TT}, 0, v{TT}")
        a.e(f"v_exp_f32 v{TT+2}, -v{TT}")
        a.e("s_nop 0")
        a.e(f"v_mul_f32 v{V_L+1}, v{V_L+1}, v{TT+2}")
        for r in range(32): a.e(f"v_mul_f32 v{O0+32+r}, v{O0+32+r}, v{TT+2}")
        for r in range(16): a.e(f"v_sub_f32 v{S1[p]+r}, v{S1[p]+r}, v{TT}")
        if SPLIT:
            a.e(f"s_cmp_lg_u32 s{S_FIN}, 0")
            a.e(f"s_cbranch_scc1 K2_s1n{sfx}")
        a.e(f"v_add_f32 v{V_M+1}, v{V_M+1}, v{TT}")
        a.e(f"v_sub_f32 v{NM0+4}, 0, v{V_M+1}")
        for r in range(1, 4): a.e(f"v_mov_b32 v{NM0+4+r}, v{NM0+4}")
        if not last and SPLIT:
            for r in range(16): a.e(f"v_sub_f32 v{S1[p^1]+r}, v{S1[p^1]+r}, v{TT}")
        a.label(f"K2_s1n{sfx}")
        exp_block(a, 1, S1[p], False)
        a.e("s_nop 1")
        a.e(f"s_branch K2_ok1{sfx}")
        if not last:
            a.label(f"K2_post{sfx}")
            a.e(f"s_cmp_eq_u32 s{S_J}, s{S_SW}")
            a.e(f"s_cbranch_scc0 K2_nosw{sfx}")
            for k in range(8):
                a.e(f"ds_read_b128 v[{Q0+4*k}:{Q0+4*k+3}], v{V_XR} offset:{1024*k}")
            for r in range(10): a.e(f"v_mov_b32 v{NM0+r}, 0")
            a.e(f"s_mov_b32 s{S_FIRST}, 1")
            a.e(f"s_mov_b32 s{S_FIN}, 1")
            a.e(f"s_mov_b32 s{S_ROW0}, s{S_ROWA}")
            a.e("s_waitcnt lgkmcnt(0)")
            a.label(f"K2_nosw{sfx}")
            if p == 1:
                a.e(f"s_cmp_eq_u32 s{S_J}, 15")
                a.e(f"s_cbranch_scc1 K2_pf")
            a.e(f"s_branch K2_postret{sfx}")

    def pf_block():
        a.label("K2_pf")
        a.e(f"s_lshl_b32 s{S_T0}, s2, 3")
        a.e(f"s_add_u32 s{S_T0}, s{S_T0}, s{S_WAVE}")
        a.e(f"s_lshl_b32 s{S_T1}, s{S_T0}, 11")
        srd(a, SRD_X, P['wo'], P['wo'] + 1, 4096 * 512 * 2)
        a.e(f"buffer_load_dwordx4 v[216:219], v{V_LANE16}, s[{SRD_X}:{SRD_X+3}], s{S_T1} offen")
        a.e(f"buffer_load_dwordx4 v[216:219], v{V_LANE16}, s[{SRD_X}:{SRD_X+3}], s{S_T1} offen offset:1024")
        a.e(f"s_and_b32 s{S_T1}, s{S_T0}, 511")
        a.e(f"s_lshl_b32 s{S_T1}, s{S_T1}, 10")
        a.e(f"s_bitcmp1_b32 s{S_T0}, 9")
        a.e(f"s_cselect_b32 s{SRD_WQ}, s{P['Cre']}, s{P['Cim']}")
        a.e(f"s_cselect_b32 s{SRD_WQ+1}, s{P['Cre']+1}, s{P['Cim']+1}")
        a.e(f"s_and_b32 s{SRD_WQ+1}, s{SRD_WQ+1}, 0xffff")
        a.e(f"s_mov_b32 s{SRD_WQ+2}, {512*512*2}")
        a.e(f"s_mov_b32 s{SRD_WQ+3}, 0x00020000")
        a.e(f"buffer_load_dwordx4 v[216:219], v{V_LANE16}, s[{SRD_WQ}:{SRD_WQ+3}], s{S_T1} offen")
        a.e("s_branch K2_postretB")
    a.e(f"v_xor_b32 v{V_RD}, 0x8000, v{V_RD}")
    scal_dma()
    a.label("K2_loop")
    body("A", 0, False)
    body("B", 1, False)
    a.e(f"s_cmp_lt_u32 s{S_J}, 16")
    a.e("s_cbranch_scc1 K2_loop")
    body("Z", 0, True)
    a.e(f"s_lshl_b32 s{S_T0}, s{S_WQ}, 14")
    a.e(f"s_add_u32 s{S_T0}, s{S_T0}, 65536")
    a.e(f"v_add_u32 v{TT+2}, s{S_T0}, v{V_LANE16}")
    a.e(f"s_lshl_b32 s{S_T0}, s{S_WQ}, 10")
    a.e(f"s_add_u32 s{S_T0}, s{S_T0}, {LDS_QST}")
    a.e(f"v_add_u32 v{TT+3}, s{S_T0}, v{V_LANE16}")
    a.e("s_barrier")
    if DIAG:
        a.e("s_memtime s[96:97]")
        a.e("s_waitcnt lgkmcnt(0)")
        a.e("v_writelane_b32 v255, s0, 37")
        a.e("v_writelane_b32 v255, s96, 38")
        a.e("s_memrealtime s[96:97]")
        a.e("s_waitcnt lgkmcnt(0)")
        a.e("v_writelane_b32 v255, s96, 62")
        a.e(f"s_lshl_b32 s{S_T0}, s2, 3")
        a.e(f"s_add_u32 s{S_T0}, s{S_T0}, s{S_WAVE}")
        a.e(f"s_lshl_b32 s{S_T0}, s{S_T0}, 8")
        a.e(f"s_add_u32 s{S_T0}, s{S_T0}, {63 << 20}")
        a.e(f"v_lshrrev_b32 v{TT+4}, 2, v{V_LANE16}")
        a.e(f"buffer_store_dword v255, v{TT+4}, s[{SRD_O}:{SRD_O+3}], s{S_T0} offen")
    a.e(f"s_cmp_eq_u32 s{S_GRP}, 0")
    a.e("s_cbranch_scc1 K2_merge")
    a.e(f"ds_write_b128 v{TT+3}, v[{V_M}:{V_M+3}]")
    for k in range(16):
        a.e(f"ds_write_b128 v{TT+2}, v[{O0+4*k}:{O0+4*k+3}] offset:{1024*k}")
    a.e("s_waitcnt vmcnt(0) lgkmcnt(0)")
    a.e("s_barrier")
    rt_end(a, 100, 1, SRD_O, S_WAVE)
    a.e("s_endpgm")
    a.label("K2_merge")
    ML = 156
    a.e(f"ds_read_b128 v[{ML}:{ML+3}], v{TT+3}")
    for k in range(16):
        a.e(f"ds_read_b128 v[{64+4*k}:{64+4*k+3}], v{TT+2} offset:{1024*k}")
    a.e("s_waitcnt lgkmcnt(15)")
    for qt in range(2):
        a.e(f"v_max_f32 v{TT}, v{V_M+qt}, v{ML+qt}")
        a.e(f"v_sub_f32 v{TT+4+qt}, v{V_M+qt}, v{TT}")
        a.e(f"v_sub_f32 v{TT+6+qt}, v{ML+qt}, v{TT}")
    for k in range(4): a.e(f"v_exp_f32 v{TT+4+k}, v{TT+4+k}")
    a.e("s_nop 0")
    for qt in range(2):
        a.e(f"v_mul_f32 v{TT+8+qt}, v{TT+4+qt}, v{V_L+qt}")
        a.e(f"v_fmac_f32 v{TT+8+qt}, v{TT+6+qt}, v{ML+2+qt}")
    for sw in ("v_permlane32_swap_b32", "v_permlane16_swap_b32"):
        a.e(f"v_mov_b32 v{TT}, v{TT+8}")
        a.e(f"v_mov_b32 v{TT+1}, v{TT+9}")
        a.e("s_nop 1")
        a.e(f"{sw} v{TT+8}, v{TT}")
        a.e(f"{sw} v{TT+9}, v{TT+1}")
        a.e("s_nop 1")
        a.e(f"v_add_f32 v{TT+8}, v{TT+8}, v{TT}")
        a.e(f"v_add_f32 v{TT+9}, v{TT+9}, v{TT+1}")
    a.e(f"v_rcp_f32 v{TT+8}, v{TT+8}")
    a.e(f"v_rcp_f32 v{TT+9}, v{TT+9}")
    a.e("s_nop 0")
    for qt in range(2):
        a.e(f"v_mul_f32 v{TT+4+qt}, v{TT+4+qt}, v{TT+8+qt}")
        a.e(f"v_mul_f32 v{TT+6+qt}, v{TT+6+qt}, v{TT+8+qt}")
    for r in range(64): a.e(f"v_mul_f32 v{O0+r}, v{O0+r}, v{TT+4+(r>>5)}")
    a.e("s_waitcnt lgkmcnt(0)")
    for r in range(64): a.e(f"v_fmac_f32 v{O0+r}, v{64+r}, v{TT+6+(r>>5)}")
    store_ctx(S_ROWA, 'c')
    rt_end(a, 100, 1, SRD_O, S_WAVE)
    a.label("K2_exit")
    a.e("s_endpgm")
    outofline('A', 0, False)
    outofline('B', 1, False)
    outofline('Z', 0, True)
    pf_block()
    return kernel_wrap("k2_kernel", a.text(), 256, 256)
```

```python
from common import *
import struct
P = dict(A_x=16, ckv=18, wq=20, wuk=22, wuv=24, wo=26, Bx=28, Lre=30, Lim=32, Bre=34, Bim=36, Cre=38, Cim=40,
         logdt=42, Dskip=44, out=46, dbg=48, ws=50)
S_WAVE, S_RT, S_CT = 3, 4, 5
S_T0, S_T1, S_T2, S_T3 = 6, 7, 8, 9
S_LB, S_CG, S_WG, S_IT, S_HG, S_CC = 10, 11, 12, 13, 14, 15
SRD_WS, SRD_WO, SRD_CR, SRD_CI, SRD_OUT, SRD_BX, SRD_DS = 52, 56, 60, 64, 68, 72, 76
S_KK, S_OB, S_XB, S_U0, S_U1 = 80, 81, 82, 83, 84
NW = 4
DEPTH = 12
WSZ = 40960
CST = 24576
LDS_BYTES = 4 * WSZ
LAUNCH = f"; @launch kernel=k3_kernel grid=(256,1,1) block=({64*NW},1,1) lds={LDS_BYTES}"
CF0 = 0
HF0 = 96
WF0 = 160
CI0 = 176
XB = 192
V_L16, V_WD, V_TR, V_CD0, V_CD1, V_CR0, V_OO, V_RA = 212, 213, 214, 215, 216, 217, 218, 219
V_T = 224
DIAG = False
ROTS = 2
import os
MAP = os.environ.get('K3MAP', '0')
W128 = os.environ.get('K3W128', '1') == '1'
AB3 = os.environ.get('AB3', '')

def gen_k3():
    a = Asm()
    nst = [0]
    def stamp():
        if not DIAG: return
        a.e("s_memtime s[96:97]")
        a.e("s_waitcnt lgkmcnt(0)"); a.lgq = []
        a.e(f"v_writelane_b32 v246, s96, {nst[0]}")
        nst[0] += 1
    a.e("s_cmp_ge_u32 s2, 256")
    a.e("s_cbranch_scc1 K3_exit")
    a.e("s_load_dwordx16 s[16:31], s[0:1], 0")
    a.e("s_load_dwordx16 s[32:47], s[0:1], 64")
    a.e("s_load_dwordx4 s[48:51], s[0:1], 128")
    a.e("v_lshrrev_b32 v1, 6, v0")
    a.e("v_and_b32 v240, 63, v0")
    a.e(f"v_readfirstlane_b32 s{S_WAVE}, v1")
    if MAP == '0':
        a.e(f"s_and_b32 s{S_T0}, s2, 7")
        a.e(f"s_lshl_b32 s{S_T0}, s{S_T0}, 2")
        a.e(f"s_bfe_u32 s{S_T1}, s2, 0x20003")
        a.e(f"s_add_u32 s{S_RT}, s{S_T0}, s{S_T1}")
        a.e(f"s_lshr_b32 s{S_CT}, s2, 5")
    else:
        a.e(f"s_bfe_u32 s{S_T0}, s2, 0x20001")
        a.e(f"s_lshl_b32 s{S_T0}, s{S_T0}, 3")
        a.e(f"s_bfe_u32 s{S_T1}, s2, 0x30003")
        a.e(f"s_add_u32 s{S_RT}, s{S_T0}, s{S_T1}")
        a.e(f"s_and_b32 s{S_T0}, s2, 1")
        a.e(f"s_lshl_b32 s{S_T0}, s{S_T0}, 2")
        a.e(f"s_lshr_b32 s{S_T2}, s2, 6")
        a.e(f"s_add_u32 s{S_CT}, s{S_T0}, s{S_T2}")
    a.e(f"s_lshl_b32 s{S_T1}, s{S_T1}, 1")
    a.e(f"s_add_u32 s{S_KK}, s{S_T1}, s{S_CT}")
    a.e(f"s_and_b32 s{S_KK}, s{S_KK}, 7")
    a.e(f"s_mul_i32 s{S_KK}, s{S_KK}, {ROTS}")
    L = 240; X = V_T; Y = V_T + 1
    a.e(f"v_lshlrev_b32 v{V_L16}, 4, v{L}")
    a.e(f"s_mul_i32 s{S_LB}, s{S_WAVE}, {WSZ}")
    a.e(f"v_lshrrev_b32 v{X}, 3, v{L}")
    a.e(f"v_and_b32 v{Y}, 7, v{L}")
    for q, dst in enumerate([V_CD0, V_CD1]):
        a.e(f"v_add_u32 v{Y+1}, {8*q}, v{X}")
        a.e(f"v_bfe_u32 v{Y+2}, v{Y+1}, 1, 3")
        a.e(f"v_xor_b32 v{Y+2}, v{Y+2}, v{Y}")
        a.e(f"v_lshlrev_b32 v{Y+2}, 4, v{Y+2}")
        a.e(f"v_lshl_add_u32 v{Y+2}, v{Y+1}, 10, v{Y+2}")
        a.e(f"v_subrev_u32 v{dst}, {1024*q}, v{Y+2}")
    if not W128:
        a.e(f"v_lshrrev_b32 v{X}, 2, v{L}")
        a.e(f"v_lshlrev_b32 v{V_WD}, 10, v{X}")
        a.e(f"v_and_b32 v{X}, 3, v{L}")
        a.e(f"v_lshl_add_u32 v{V_WD}, v{X}, 4, v{V_WD}")
    else:
        a.e(f"v_lshrrev_b32 v{X}, 3, v{L}")
        a.e(f"v_lshlrev_b32 v{V_WD}, 10, v{X}")
        a.e(f"v_bfe_u32 v{X}, v{L}, 4, 1")
        a.e(f"v_lshlrev_b32 v{X}, 2, v{X}")
        a.e(f"v_and_b32 v{Y}, 7, v{L}")
        a.e(f"v_xor_b32 v{X}, v{X}, v{Y}")
        a.e(f"v_lshl_add_u32 v{V_WD}, v{X}, 4, v{V_WD}")
    a.e(f"s_lshl_b32 s{S_CC}, s{S_CT}, 16")
    a.e(f"s_lshl_b32 s{S_T0}, s{S_WAVE}, 8")
    a.e(f"s_add_u32 s{S_CC}, s{S_CC}, s{S_T0}")
    a.e(f"s_lshl_b32 s{S_HG}, s{S_RT}, 17")
    a.e(f"s_lshl_b32 s{S_T0}, s{S_WAVE}, 14")
    a.e(f"s_add_u32 s{S_HG}, s{S_HG}, s{S_T0}")
    a.e(f"s_add_u32 s{S_HG}, s{S_HG}, {HF_OFF}")
    a.e(f"s_lshl_b32 s{S_CG}, s{S_RT}, 19")
    a.e(f"s_lshl_b32 s{S_T0}, s{S_WAVE}, 16")
    a.e(f"s_add_u32 s{S_CG}, s{S_CG}, s{S_T0}")
    a.e(f"s_add_u32 s{S_CG}, s{S_CG}, {CTX_OFF}")
    a.e(f"s_lshl_b32 s{S_WG}, s{S_WAVE}, 20")
    a.e(f"s_lshl_b32 s{S_T0}, s{S_CT}, 7")
    a.e(f"s_add_u32 s{S_WG}, s{S_WG}, s{S_T0}")
    a.e("s_waitcnt lgkmcnt(0)")
    rt_start(a, 90)
    stamp()
    srd(a, SRD_WS, P['ws'], P['ws'] + 1, 64 << 20)
    srd(a, SRD_CR, P['Cre'], P['Cre'] + 1, 512 * 512 * 2)
    srd(a, SRD_CI, P['Cim'], P['Cim'] + 1, 512 * 512 * 2)
    srd(a, SRD_WO, P['wo'], P['wo'] + 1, 4096 * 512 * 2)

    def a_issue(k):
        pos = k % DEPTH
        a.e(f"s_lshl_b32 s{S_T0}, s{S_KK}, 10")
        a.e(f"s_add_u32 s{S_T0}, s{S_T0}, s{S_CG}")
        a.e(f"s_add_u32 s{S_T1}, s{S_T0}, 262144")
        r = CF0 + pos * 8
        if 'noctx' not in AB3:
            a.vm(f"buffer_load_dwordx4 v[{r}:{r+3}], v{V_L16}, s[{SRD_WS}:{SRD_WS+3}], s{S_T0} offen", ('c', k))
            a.vm(f"buffer_load_dwordx4 v[{r+4}:{r+7}], v{V_L16}, s[{SRD_WS}:{SRD_WS+3}], s{S_T1} offen", ('c', k))
        a.e(f"s_add_u32 m0, s{S_LB}, {pos*2048}")
        a.e(f"s_lshl_b32 s{S_T2}, s{S_KK}, 14")
        a.e(f"s_add_u32 s{S_T2}, s{S_T2}, s{S_WG}")
        if 'nowo' not in AB3: a.vm(f"buffer_load_dwordx4 v{V_WD}, s[{SRD_WO}:{SRD_WO+3}], s{S_T2} offen lds", ('c', k))
        a.e(f"s_add_u32 m0, s{S_LB}, {pos*2048 + 1024}")
        a.e(f"s_add_u32 s{S_T2}, s{S_T2}, {8192 if W128 else 64}")
        if 'nowo' not in AB3: a.vm(f"buffer_load_dwordx4 v{V_WD}, s[{SRD_WO}:{SRD_WO+3}], s{S_T2} offen lds", ('c', k))
        a.e(f"s_add_u32 s{S_KK}, s{S_KK}, 1")
        a.e(f"s_and_b32 s{S_KK}, s{S_KK}, 63")
    def w_read(k):
        pos = k % DEPTH
        a.wait(vm=('c', k))
        r = WF0 + (k & 1) * 8
        for un in range(2):
            if not W128:
                a.ds(f"ds_read_b64_tr_b16 v[{r+un*4}:{r+un*4+1}], v{V_TR} offset:{pos*2048 + un*1024}", ('w', k))
                a.ds(f"ds_read_b64_tr_b16 v[{r+un*4+2}:{r+un*4+3}], v{V_TR} offset:{pos*2048 + un*1024 + 512}", ('w', k))
            else:
                vt = V_TR if un == 0 else 223
                a.ds(f"ds_read_b64_tr_b16 v[{r+un*4}:{r+un*4+1}], v{vt} offset:{pos*2048}", ('w', k))
                a.ds(f"ds_read_b64_tr_b16 v[{r+un*4+2}:{r+un*4+3}], v{vt} offset:{pos*2048 + 1024}", ('w', k))
    def c_dma(blk):
        for mat in range(2):
            sd = SRD_CR if mat == 0 else SRD_CI
            for qq in range(4):
                a.e(f"s_add_u32 m0, s{S_LB}, {CST + mat*8192 + qq*2048}")
                a.e(f"s_add_u32 s{S_T0}, s{S_CC}, {blk*128 + qq*16384}")
                a.vm(f"buffer_load_dwordx4 v{V_CD0}, s[{sd}:{sd+3}], s{S_T0} offen lds", ('cd', blk))
                a.vm(f"buffer_load_dwordx4 v{V_CD1}, s[{sd}:{sd+3}], s{S_T0} offen offset:1024 lds", ('cd', blk))
    def h_issue(k):
        a.e(f"s_add_u32 s{S_T0}, s{S_HG}, {k*1024}")
        a.e(f"s_add_u32 s{S_T1}, s{S_HG}, {k*1024 + 65536}")
        r = HF0 + (k % 8) * 8
        a.vm(f"buffer_load_dwordx4 v[{r}:{r+3}], v{V_L16}, s[{SRD_WS}:{SRD_WS+3}], s{S_T0} offen", ('h', k))
        a.vm(f"buffer_load_dwordx4 v[{r+4}:{r+7}], v{V_L16}, s[{SRD_WS}:{SRD_WS+3}], s{S_T1} offen", ('h', k))

    c_dma(0)
    for k in range(8): h_issue(k)
    for k in range(DEPTH): a_issue(k)
    srd(a, SRD_OUT, P['out'], P['out'] + 1, 2048 * 1024 * 4)
    srd(a, SRD_BX, P['Bx'], P['Bx'] + 1, 2048 * 512 * 2)
    srd(a, SRD_DS, P['Dskip'], P['Dskip'] + 1, 1024)
    a.e(f"v_lshrrev_b32 v{X}, 5, v{L}")
    a.e(f"v_lshlrev_b32 v{V_TR}, {9 if W128 else 8}, v{X}")
    a.e(f"v_bfe_u32 v{X}, v{L}, 2, 2")
    a.e(f"v_lshl_add_u32 v{V_TR}, v{X}, {7 if W128 else 6}, v{V_TR}")
    if W128:
        a.e(f"v_bfe_u32 v{X}, v{L}, 3, 1")
        a.e(f"v_lshl_add_u32 v{V_TR}, v{X}, 6, v{V_TR}")
    a.e(f"v_bfe_u32 v{X}, v{L}, 4, 1")
    a.e(f"v_lshl_add_u32 v{V_TR}, v{X}, 5, v{V_TR}")
    a.e(f"v_and_b32 v{X}, 3, v{L}")
    a.e(f"v_lshl_add_u32 v{V_TR}, v{X}, 3, v{V_TR}")
    a.e(f"v_add_u32 v{V_TR}, s{S_LB}, v{V_TR}")
    if W128: a.e(f"v_xor_b32 v223, 64, v{V_TR}")
    a.e(f"v_and_b32 v{X}, 31, v{L}")
    a.e(f"v_lshlrev_b32 v{Y}, 7, v{X}")
    a.e(f"s_add_u32 s{S_T0}, s{S_LB}, {CST}")
    a.e(f"v_add_u32 v{Y}, s{S_T0}, v{Y}")
    a.e(f"v_bfe_u32 v{Y+1}, v{L}, 1, 3")
    a.e(f"v_lshrrev_b32 v{Y+2}, 5, v{L}")
    a.e(f"v_xor_b32 v{Y+1}, v{Y+1}, v{Y+2}")
    a.e(f"v_lshl_add_u32 v{V_CR0}, v{Y+1}, 4, v{Y}")
    a.e(f"s_mov_b32 s{S_T3}, 0x05040100")
    a.e(f"s_mov_b32 s{S_IT}, 0x07060302")
    a.e(f"s_lshl_b32 s{S_T0}, s{S_CT}, 6")
    a.e(f"s_and_b32 s{S_T1}, s{S_WAVE}, 1")
    a.e(f"s_lshl_b32 s{S_T1}, s{S_T1}, 5")
    a.e(f"s_add_u32 s{S_T0}, s{S_T0}, s{S_T1}")
    a.e(f"s_lshl_b32 s{S_T1}, s{S_RT}, 6")
    a.e(f"s_lshr_b32 s{S_T2}, s{S_WAVE}, 1")
    a.e(f"s_lshl_b32 s{S_T2}, s{S_T2}, 5")
    a.e(f"s_add_u32 s{S_T1}, s{S_T1}, s{S_T2}")
    a.e(f"v_add_u32 v{X}, s{S_T0}, v{X}")
    a.e(f"v_lshlrev_b32 v{V_OO}, 2, v{X}")
    a.e(f"v_lshl_add_u32 v{V_OO}, v{Y+2}, 14, v{V_OO}")
    a.e(f"s_lshl_b32 s{S_OB}, s{S_T1}, 12")
    a.e(f"s_lshl_b32 s{S_XB}, s{S_T1}, 10")
    a.e(f"v_lshlrev_b32 v{Y+3}, 1, v{X}")
    a.e(f"v_lshl_add_u32 v{Y+4}, v{Y+2}, 12, v{Y+3}")
    a.e(f"s_lshl_b32 s{S_T0}, s{S_WAVE}, 12")
    a.e(f"v_add_u32 v{V_RA}, s{S_T0}, v{V_L16}")
    for w in range(1, 4): a.e(f"v_add_u32 v{V_RA+w}, {w*WSZ}, v{V_RA}")
    a.e(f"v_add_u32 v{Y+5}, s{S_LB}, v{V_L16}")
    V_PW = Y + 5; V_DSO = Y + 3; V_XBO = Y + 4

    def b_group(G):
        Gp = G & 3
        if Gp == 0: a.wait(vm=('cd', G >> 2))
        if Gp: a.e(f"v_xor_b32 v{X}, {32*Gp}, v{V_CR0}")
        va = X if Gp else V_CR0
        for un in range(2):
            for mat in range(2):
                r = CI0 + (un * 2 + mat) * 4
                a.ds(f"ds_read_b128 v[{r}:{r+3}], v{va} offset:{mat*8192 + un*4096}", ('cr', G))
        a.wait(lg=('cr', G))
        for st in range(2):
            for un in range(2):
                re, im = CI0 + un * 8 + 2 * st, CI0 + un * 8 + 4 + 2 * st
                w = WF0 + st * 8 + un * 4
                a.e(f"v_perm_b32 v{w}, v{im}, v{re}, s{S_T3}")
                a.e(f"v_perm_b32 v{w+1}, v{im}, v{re}, s{S_IT}")
                a.e(f"v_perm_b32 v{w+2}, v{im+1}, v{re+1}, s{S_T3}")
                a.e(f"v_perm_b32 v{w+3}, v{im+1}, v{re+1}, s{S_IT}")
        a.e("s_nop 1")
        for st in range(2):
            k = 2 * G + st
            a.wait(vm=('h', k))
            for mt in range(2):
                for un in range(2):
                    D = ar(64 + (mt * 2 + un) * 16, 16)
                    a.e(mfma(D, vr(HF0 + (k % 8) * 8 + mt * 4, 4), vr(WF0 + st * 8 + un * 4, 4), "0" if k == 0 else D))
            if k + 8 < 16: h_issue(k + 8)
    NKA = 64
    def a_steps(k0, k1, side=None):
        w_read(k0)
        for k in range(k0, k1):
            if k % 8 == 0: stamp()
            if k + 1 < k1: w_read(k + 1)
            a.wait(lg=('w', k))
            for mt in range(2):
                for un in range(2):
                    D = ar((mt * 2 + un) * 16, 16)
                    a.e(mfma(D, vr(CF0 + (k % DEPTH) * 8 + mt * 4, 4), vr(WF0 + (k & 1) * 8 + un * 4, 4), "0" if k == 0 else D))
                    if side:
                        for _ in range(3):
                            if len(side): side.pop(a)
            if k + DEPTH < NKA: a_issue(k + DEPTH)
    def reduce_reads(q, base_off, dst):
        for w in range(4):
            for g in range(4):
                r = dst + w * 16 + 4 * g
                q.ds(f"ds_read_b128 v[{r}:{r+3}], v{V_RA+w} offset:{base_off + g * 1024}", 'red')
        q.wait(lg='red')
        for r in range(16):
            q.e(f"v_add_f32 v{dst+r}, v{dst+r}, v{dst+16+r}")
            q.e(f"v_add_f32 v{dst+32+r}, v{dst+32+r}, v{dst+48+r}")
        for r in range(16):
            q.e(f"v_add_f32 v{dst+r}, v{dst+r}, v{dst+32+r}")
    def out_store(q, src, off):
        for r in range(16):
            if (r & 3) == 0: q.e(f"s_add_u32 s{S_U0}, s{S_OB}, {8 * (r >> 2) * 4096}")
            else: q.e(f"s_add_u32 s{S_U0}, s{S_U0}, 4096")
            q.vm(f"buffer_store_dword v{src+r}, v{V_OO}, s[{SRD_OUT}:{SRD_OUT+3}], s{S_U0} offen offset:{off}", 'o')

    stamp()
    for G in range(4): b_group(G)
    c_dma(1)
    a_steps(0, 16)
    for G in range(4, 8): b_group(G)
    a.vm(f"buffer_load_ushort v{XB+16}, v{V_DSO}, s[{SRD_DS}:{SRD_DS+3}], 0 offen", 'xb')
    for r in range(16):
        if (r & 3) == 0: a.e(f"s_add_u32 s{S_U0}, s{S_XB}, {8 * (r >> 2) * 1024}")
        a.vm(f"buffer_load_ushort v{XB+r}, v{V_XBO}, s[{SRD_BX}:{SRD_BX+3}], s{S_U0} offen offset:{(r & 3) * 1024}", 'xb')
    side = Rec()
    side.e("s_nop 7")
    for t in range(4):
        for g in range(4):
            side.ds(f"ds_write_b128 v{V_PW}, a[{64+t*16+4*g}:{64+t*16+4*g+3}] offset:{CST + t*4096 + g*1024}", 'pw')
    a_steps(16, 24, side)
    assert not len(side)
    a.wait(lg='pw')
    a.e("s_barrier")
    side = Rec()
    reduce_reads(side, CST, HF0)
    side.wait(vm='xb')
    side.e(f"v_lshlrev_b32 v{XB+16}, 16, v{XB+16}")
    for r in range(16):
        side.e(f"v_lshlrev_b32 v{XB+r}, 16, v{XB+r}")
        side.e(f"v_mul_f32 v{XB+r}, v{XB+r}, v{XB+16}")
    for r in range(0, 16, 2):
        side.e(f"v_cvt_pk_bf16_f32 v{XB+r}, v{XB+r}, v{XB+r+1}")
        side.e(f"v_and_b32 v{XB+r+1}, 0xffff0000, v{XB+r}")
        side.e(f"v_lshlrev_b32 v{XB+r}, 16, v{XB+r}")
        side.e(f"v_add_f32 v{HF0+r}, v{HF0+r}, v{XB+r}")
        side.e(f"v_add_f32 v{HF0+r+1}, v{HF0+r+1}, v{XB+r+1}")
    out_store(side, HF0, 2048)
    a_steps(24, NKA, side)
    assert not len(side)
    stamp()
    a.e("s_nop 15")
    for t in range(4):
        for g in range(4):
            a.ds(f"ds_write_b128 v{V_PW}, a[{t*16+4*g}:{t*16+4*g+3}] offset:{t*4096 + g*1024}", 'pw')
    a.wait(lg='pw')
    a.e("s_barrier")
    reduce_reads(a, 0, CF0)
    for r in range(0, 16, 2):
        a.e(f"v_cvt_pk_bf16_f32 v{CF0+16+r}, v{CF0+r}, v{CF0+r+1}")
        a.e(f"v_and_b32 v{CF0+17+r}, 0xffff0000, v{CF0+16+r}")
        a.e(f"v_lshlrev_b32 v{CF0+16+r}, 16, v{CF0+16+r}")
    out_store(a, CF0 + 16, 0)
    if DIAG:
        stamp()
        a.e("s_waitcnt vmcnt(0)")
        stamp()
        a.e(f"s_lshl_b32 s{S_T0}, s2, 2")
        a.e(f"s_add_u32 s{S_T0}, s{S_T0}, s{S_WAVE}")
        a.e(f"s_lshl_b32 s{S_T0}, s{S_T0}, 8")
        a.e(f"s_add_u32 s{S_T0}, s{S_T0}, {63 << 20}")
        a.e(f"v_lshrrev_b32 v{X}, 2, v{V_L16}")
        a.e(f"buffer_store_dword v246, v{X}, s[{SRD_WS}:{SRD_WS+3}], s{S_T0} offen")
    rt_end(a, 90, 2, SRD_WS, S_WAVE)
    a.label("K3_exit")
    a.e("s_endpgm")
    return kernel_wrap("k3_kernel", a.text(), 256 + 128, 256)
```

```python
from common import *
P = dict(A_x=16, ckv=18, wq=20, wuk=22, wuv=24, wo=26, Bx=28, Lre=30, Lim=32, Bre=34, Bim=36, Cre=38, Cim=40,
         logdt=42, Dskip=44, out=46, dbg=48, ws=50)
S_WAVE = 3
SRD_WS = 64
S_RT, S_CT = 4, 72
S_T0, S_T1, S_T2, S_T3 = 6, 7, 8, 9
S_LB, S_CG, S_WG, S_IT, S_HG, S_CC = 10, 11, 12, 13, 14, 15
SRD_WO, SRD_CR, SRD_CI, SRD_OUT, SRD_BX, SRD_DS = 52, 56, 60, 68, 76, 80
S_OB, S_XB, S_U0, S_OBB = 73, 74, 75, 84
DEPTH = 6
WSZ = 20480; CST = 12288
ACA, ACB = 0, 64
CF0 = 128
HF0 = 176
BF0 = 200
WF0 = 208
CI0 = 224
V_L16, V_WD, V_TR, V_CD, V_CR0, V_OO, V_XBO, V_DSO, V_PW, V_RA, X, Y, L = 240, 241, 242, 243, 244, 245, 246, 247, 248, 249, 250, 251, 255
V_OB, V_PB, V_RB = 252, 253, 254

LAUNCH = "; @launch kernel=k3_kernel grid=(256,1,1) block=(512,1,1) lds=163840"
DIAG = False
import os
AB3 = os.environ.get('AB3', '')
def gen_k3():
    a = Asm()
    a.e("s_cmp_ge_u32 s2, 256")
    a.e("s_cbranch_scc1 K3_exit")
    a.e("s_load_dwordx16 s[16:31], s[0:1], 0")
    a.e("s_load_dwordx16 s[32:47], s[0:1], 64")
    a.e("s_load_dwordx4 s[48:51], s[0:1], 128")
    a.e("v_lshrrev_b32 v1, 6, v0")
    a.e("s_nop 0")
    a.e("v_readfirstlane_b32 s3, v1")
    a.e(f"v_mbcnt_lo_u32_b32 v{L}, -1, 0")
    a.e(f"v_mbcnt_hi_u32_b32 v{L}, -1, v{L}")
    a.e(f"s_bfe_u32 s{S_T0}, s2, 0x20001")
    a.e(f"s_lshl_b32 s{S_T0}, s{S_T0}, 3")
    a.e(f"s_bfe_u32 s{S_T1}, s2, 0x30003")
    a.e(f"s_add_u32 s{S_RT}, s{S_T0}, s{S_T1}")
    a.e(f"s_and_b32 s{S_T0}, s2, 1")
    a.e(f"s_lshl_b32 s{S_T0}, s{S_T0}, 2")
    a.e(f"s_lshr_b32 s{S_T1}, s2, 6")
    a.e(f"s_add_u32 s{S_CT}, s{S_T0}, s{S_T1}")
    a.e(f"v_lshlrev_b32 v{V_L16}, 4, v{L}")
    a.e(f"s_mul_i32 s{S_LB}, s{S_WAVE}, {WSZ}")
    a.e(f"v_lshrrev_b32 v{X}, 2, v{L}")
    a.e(f"v_lshlrev_b32 v{V_WD}, 10, v{X}")
    a.e(f"v_and_b32 v{X}, 3, v{L}")
    a.e(f"v_lshrrev_b32 v{Y}, 4, v{L}")
    a.e(f"v_xor_b32 v{Y}, v{X}, v{Y}")
    a.e(f"v_lshl_add_u32 v{V_CD}, v{Y}, 4, v{V_WD}")
    a.e(f"v_lshl_add_u32 v{V_WD}, v{X}, 4, v{V_WD}")
    a.e(f"s_lshl_b32 s{S_CC}, s{S_CT}, 16")
    a.e(f"s_lshl_b32 s{S_T0}, s{S_WAVE}, 7")
    a.e(f"s_add_u32 s{S_CC}, s{S_CC}, s{S_T0}")
    a.e(f"s_lshl_b32 s{S_HG}, s{S_RT}, 17")
    a.e(f"s_lshl_b32 s{S_T0}, s{S_WAVE}, 13")
    a.e(f"s_add_u32 s{S_HG}, s{S_HG}, s{S_T0}")
    a.e(f"s_add_u32 s{S_HG}, s{S_HG}, {HF_OFF}")
    a.e(f"s_lshl_b32 s{S_CG}, s{S_RT}, 19")
    a.e(f"s_lshl_b32 s{S_T0}, s{S_WAVE}, 15")
    a.e(f"s_add_u32 s{S_CG}, s{S_CG}, s{S_T0}")
    a.e(f"s_add_u32 s{S_CG}, s{S_CG}, {CTX_OFF}")
    a.e(f"s_lshl_b32 s{S_WG}, s{S_WAVE}, 19")
    a.e(f"s_lshl_b32 s{S_T0}, s{S_CT}, 7")
    a.e(f"s_add_u32 s{S_WG}, s{S_WG}, s{S_T0}")
    a.e("s_waitcnt lgkmcnt(0)")
    rt_start(a, 90)
    srd(a, SRD_WS, P['ws'], P['ws'] + 1, 64 << 20)
    srd(a, SRD_WO, P['wo'], P['wo'] + 1, 4096 * 512 * 2)
    srd(a, SRD_CR, P['Cre'], P['Cre'] + 1, 512 * 512 * 2)
    srd(a, SRD_CI, P['Cim'], P['Cim'] + 1, 512 * 512 * 2)

    def w_issue(k):
        pos = (k % DEPTH) >> 1
        a.e(f"s_add_u32 m0, s{S_LB}, {pos*4096 + (k&1)*1024}")
        a.e(f"s_add_u32 s{S_T2}, s{S_WG}, {k*16384}")
        if 'nowo' not in AB3: a.vm(f"buffer_load_dwordx4 v{V_WD}, s[{SRD_WO}:{SRD_WO+3}], s{S_T2} offen lds", ('c', k))
        a.e(f"s_add_u32 m0, s{S_LB}, {pos*4096 + (k&1)*1024 + 2048}")
        a.e(f"s_add_u32 s{S_T2}, s{S_T2}, 64")
        if 'nowo' not in AB3: a.vm(f"buffer_load_dwordx4 v{V_WD}, s[{SRD_WO}:{SRD_WO+3}], s{S_T2} offen lds", ('c', k))
    def c_issue(k):
        r = CF0 + (k % DEPTH) * 8
        a.e(f"s_add_u32 s{S_T0}, s{S_CG}, {k*1024}")
        a.e(f"s_add_u32 s{S_T1}, s{S_CG}, {k*1024 + 262144}")
        if 'noctx' in AB3: return
        if 'same' in AB3:
            a.e(f"s_and_b32 s{S_T0}, s{S_T0}, 0x20fffff")
            a.e(f"s_and_b32 s{S_T1}, s{S_T1}, 0x20fffff")
        a.vm(f"buffer_load_dwordx4 v[{r}:{r+3}], v{V_L16}, s[{SRD_WS}:{SRD_WS+3}], s{S_T0} offen", ('c', k))
        a.vm(f"buffer_load_dwordx4 v[{r+4}:{r+7}], v{V_L16}, s[{SRD_WS}:{SRD_WS+3}], s{S_T1} offen", ('c', k))
    def w_read(k):
        pos = (k % DEPTH) >> 1
        a.wait(vm=('c', k | 1))
        r = WF0 + (k & 1) * 8
        for un in range(2):
            o = pos*4096 + un*2048 + (k & 1) * 512
            a.ds(f"ds_read_b64_tr_b16 v[{r+un*4}:{r+un*4+1}], v{V_TR} offset:{o}", ('w', k))
            a.ds(f"ds_read_b64_tr_b16 v[{r+un*4+2}:{r+un*4+3}], v{V_TR} offset:{o + 1024}", ('w', k))
    def c_dma(rnd):
        for mat in range(2):
            sd = SRD_CR if mat == 0 else SRD_CI
            for q in range(4):
                a.e(f"s_add_u32 m0, s{S_LB}, {CST + mat*4096 + q*1024}")
                a.e(f"s_add_u32 s{S_T0}, s{S_CC}, {rnd*64 + q*16384}")
                a.vm(f"buffer_load_dwordx4 v{V_CD}, s[{sd}:{sd+3}], s{S_T0} offen lds", ('cd', rnd))
    def h_issue(k):
        a.e(f"s_add_u32 s{S_T0}, s{S_HG}, {k*1024}")
        a.e(f"s_add_u32 s{S_T1}, s{S_HG}, {k*1024 + 65536}")
        r = HF0 + (k % 3) * 8
        a.vm(f"buffer_load_dwordx4 v[{r}:{r+3}], v{V_L16}, s[{SRD_WS}:{SRD_WS+3}], s{S_T0} offen", ('h', k))
        a.vm(f"buffer_load_dwordx4 v[{r+4}:{r+7}], v{V_L16}, s[{SRD_WS}:{SRD_WS+3}], s{S_T1} offen", ('h', k))

    c_dma(0)
    for k in range(3): h_issue(k)
    for k in range(DEPTH): c_issue(k); w_issue(k)
    srd(a, SRD_OUT, P['out'], P['out'] + 1, 2048 * 1024 * 4)
    srd(a, SRD_BX, P['Bx'], P['Bx'] + 1, 2048 * 512 * 2)
    srd(a, SRD_DS, P['Dskip'], P['Dskip'] + 1, 1024)
    a.e(f"v_lshrrev_b32 v{X}, 5, v{L}")
    a.e(f"v_lshlrev_b32 v{V_TR}, 8, v{X}")
    a.e(f"v_bfe_u32 v{X}, v{L}, 2, 2")
    a.e(f"v_lshl_add_u32 v{V_TR}, v{X}, 6, v{V_TR}")
    a.e(f"v_bfe_u32 v{X}, v{L}, 4, 1")
    a.e(f"v_lshl_add_u32 v{V_TR}, v{X}, 5, v{V_TR}")
    a.e(f"v_and_b32 v{X}, 3, v{L}")
    a.e(f"v_lshl_add_u32 v{V_TR}, v{X}, 3, v{V_TR}")
    a.e(f"v_add_u32 v{V_TR}, s{S_LB}, v{V_TR}")
    a.e(f"v_and_b32 v{X}, 31, v{L}")
    a.e(f"v_lshlrev_b32 v{Y}, 6, v{X}")
    a.e(f"s_add_u32 s{S_T0}, s{S_LB}, {CST}")
    a.e(f"v_add_u32 v{Y}, s{S_T0}, v{Y}")
    a.e(f"v_bfe_u32 v{Y+1}, v{L}, 2, 2")
    a.e(f"v_lshrrev_b32 v{Y+2}, 5, v{L}")
    a.e(f"v_xor_b32 v{Y+1}, v{Y+1}, v{Y+2}")
    a.e(f"v_lshl_add_u32 v{V_CR0}, v{Y+1}, 4, v{Y}")
    a.e(f"s_mov_b32 s{S_T3}, 0x05040100")
    a.e(f"s_mov_b32 s{S_IT}, 0x07060302")
    a.e(f"s_lshl_b32 s{S_T0}, s{S_CT}, 6")
    a.e(f"s_bfe_u32 s{S_T1}, s{S_WAVE}, 0x10001")
    a.e(f"s_lshl_b32 s{S_T1}, s{S_T1}, 5")
    a.e(f"s_add_u32 s{S_T0}, s{S_T0}, s{S_T1}")
    a.e(f"s_lshl_b32 s{S_T1}, s{S_RT}, 6")
    a.e(f"s_lshr_b32 s{S_T2}, s{S_WAVE}, 2")
    a.e(f"s_lshl_b32 s{S_T2}, s{S_T2}, 5")
    a.e(f"s_add_u32 s{S_T1}, s{S_T1}, s{S_T2}")
    a.e(f"s_and_b32 s{S_T2}, s{S_WAVE}, 1")
    a.e(f"s_lshl_b32 s{S_T2}, s{S_T2}, 4")
    a.e(f"s_add_u32 s{S_T1}, s{S_T1}, s{S_T2}")
    a.e(f"v_add_u32 v{X}, s{S_T0}, v{X}")
    a.e(f"v_lshlrev_b32 v{V_OO}, 2, v{X}")
    a.e(f"v_lshl_add_u32 v{V_OO}, v{Y+2}, 14, v{V_OO}")
    a.e(f"s_lshl_b32 s{S_OB}, s{S_T1}, 12")
    a.e(f"v_and_b32 v{X}, 31, v{L}")
    a.e(f"s_lshl_b32 s{S_T0}, s{S_CT}, 6")
    a.e(f"s_lshr_b32 s{S_T1}, s{S_WAVE}, 2")
    a.e(f"s_lshl_b32 s{S_T1}, s{S_T1}, 5")
    a.e(f"s_add_u32 s{S_T0}, s{S_T0}, s{S_T1}")
    a.e(f"v_add_u32 v{X}, s{S_T0}, v{X}")
    a.e(f"v_lshlrev_b32 v{V_DSO}, 1, v{X}")
    a.e(f"v_lshl_add_u32 v{V_XBO}, v{Y+2}, 12, v{V_DSO}")
    a.e(f"v_lshlrev_b32 v{V_OB}, 2, v{X}")
    a.e(f"v_lshl_add_u32 v{V_OB}, v{Y+2}, 14, v{V_OB}")
    a.e(f"s_lshl_b32 s{S_T1}, s{S_RT}, 6")
    a.e(f"s_and_b32 s{S_T2}, s{S_WAVE}, 3")
    a.e(f"s_lshl_b32 s{S_T2}, s{S_T2}, 3")
    a.e(f"s_add_u32 s{S_T1}, s{S_T1}, s{S_T2}")
    a.e(f"s_lshl_b32 s{S_OBB}, s{S_T1}, 12")
    a.e(f"s_lshl_b32 s{S_XB}, s{S_T1}, 10")
    a.e(f"s_add_u32 s{S_T0}, s{S_LB}, {CST}")
    a.e(f"v_add_u32 v{V_PB}, s{S_T0}, v{V_L16}")
    a.e(f"s_lshl_b32 s{S_T0}, s{S_WAVE}, 10")
    a.e(f"s_add_u32 s{S_T0}, s{S_T0}, {CST}")
    a.e(f"v_add_u32 v{V_RB}, s{S_T0}, v{V_L16}")
    a.e(f"s_lshl_b32 s{S_T0}, s{S_WAVE}, 14")
    a.e(f"v_add_u32 v{V_PW}, s{S_T0}, v{V_L16}")
    a.e(f"s_lshl_b32 s{S_T0}, s{S_WAVE}, 11")
    a.e(f"v_add_u32 v{V_RA}, s{S_T0}, v{V_L16}")
    BW = CI0
    def b_group(G):
        rnd, Gp = G >> 1, G & 1
        if Gp == 0: a.wait(vm=('cd', rnd))
        if Gp: a.e(f"v_xor_b32 v{X}, 32, v{V_CR0}")
        va = X if Gp else V_CR0
        for un in range(2):
            for mat in range(2):
                r = CI0 + (un * 2 + mat) * 4
                a.ds(f"ds_read_b128 v[{r}:{r+3}], v{va} offset:{mat*4096 + un*2048}", ('cr', G))
        a.wait(lg=('cr', G))
        for st in range(2):
            k = 2 * G + st
            for un in range(2):
                re, im = CI0 + un * 8 + 2 * st, CI0 + un * 8 + 4 + 2 * st
                w = BF0 + un * 4
                a.e(f"v_perm_b32 v{w}, v{im}, v{re}, s{S_T3}")
                a.e(f"v_perm_b32 v{w+1}, v{im}, v{re}, s{S_IT}")
                a.e(f"v_perm_b32 v{w+2}, v{im+1}, v{re+1}, s{S_T3}")
                a.e(f"v_perm_b32 v{w+3}, v{im+1}, v{re+1}, s{S_IT}")
            a.e("s_nop 1")
            a.wait(vm=('h', k))
            for mt in range(2):
                for un in range(2):
                    D = vr(ACB + (mt * 2 + un) * 16, 16)
                    a.e(mfma(D, vr(HF0 + (k % 3) * 8 + mt * 4, 4), vr(BF0 + un * 4, 4), "0" if k == 0 else D))
            if k + 3 < 8: h_issue(k + 3)
    NKA = 32
    XB = HF0
    def xb_loads():
        a.vm(f"buffer_load_ushort v{XB+8}, v{V_DSO}, s[{SRD_DS}:{SRD_DS+3}], 0 offen", 'xb')
        for ps in range(2):
            a.e(f"s_add_u32 s{S_U0}, s{S_XB}, {ps * 32768}")
            for r in range(4):
                a.vm(f"buffer_load_ushort v{XB+ps*4+r}, v{V_XBO}, s[{SRD_BX}:{SRD_BX+3}], s{S_U0} offen offset:{r * 1024}", 'xb')
    def b_write(ps):
        for t in range(2):
            for g in range(4):
                r = ACB + (2 * ps + t) * 16 + 4 * g
                a.ds(f"ds_write_b128 v{V_PB}, v[{r}:{r+3}] offset:{t*4096 + g*1024}", 'bw')
        a.wait(lg='bw')
        a.e("s_barrier")
    def b_reduce(ps):
        d = ACB + ps * 32
        for w in range(8):
            if w: a.e(f"v_add_u32 v{X}, {w * WSZ}, v{V_RB}")
            a.ds(f"ds_read_b128 v[{d+4*w}:{d+4*w+3}], v{X if w else V_RB}", 'br')
        a.wait(lg='br')
        a.e("s_barrier")
        for st in (16, 8, 4):
            for r in range(st): a.e(f"v_add_f32 v{d+r}, v{d+r}, v{d+st+r}")
        a.wait(vm='xb')
        x = XB + ps * 4
        if ps == 0:
            a.e(f"v_lshlrev_b32 v{XB+8}, 16, v{XB+8}")
        for r in range(4):
            a.e(f"v_lshlrev_b32 v{x+r}, 16, v{x+r}")
            a.e(f"v_mul_f32 v{x+r}, v{x+r}, v{XB+8}")
        for r in (0, 2):
            a.e(f"v_cvt_pk_bf16_f32 v{x+r}, v{x+r}, v{x+r+1}")
            a.e(f"v_and_b32 v{x+r+1}, 0xffff0000, v{x+r}")
            a.e(f"v_lshlrev_b32 v{x+r}, 16, v{x+r}")
            a.e(f"v_add_f32 v{d+r}, v{d+r}, v{x+r}")
            a.e(f"v_add_f32 v{d+r+1}, v{d+r+1}, v{x+r+1}")
        a.e(f"s_add_u32 s{S_U0}, s{S_OBB}, {ps * 131072}")
        for r in range(4):
            a.vm(f"buffer_store_dword v{d+r}, v{V_OB}, s[{SRD_OUT}:{SRD_OUT+3}], s{S_U0} offen offset:2048", 'o')
            if r < 3: a.e(f"s_add_u32 s{S_U0}, s{S_U0}, 4096")
    hooks = {3: lambda: b_group(0), 5: lambda: (b_group(1), c_dma(1)), 12: lambda: b_group(2), 14: lambda: (b_group(3), xb_loads()),
             17: lambda: b_write(0), 19: lambda: b_reduce(0), 21: lambda: b_write(1), 23: lambda: b_reduce(1)}
    w_read(0)
    for k in range(NKA):
        if k + 1 < NKA: w_read(k + 1)
        a.wait(lg=('w', k))
        for mt in range(2):
            for un in range(2):
                D = vr(ACA + (mt * 2 + un) * 16, 16)
                a.e(mfma(D, vr(CF0 + (k % DEPTH) * 8 + mt * 4, 4), vr(WF0 + (k & 1) * 8 + un * 4, 4), "0" if k == 0 else D))
        if (k & 1) and k + DEPTH < NKA:
            c_issue(k + DEPTH - 1); w_issue(k + DEPTH - 1); c_issue(k + DEPTH); w_issue(k + DEPTH)
        if k in hooks: hooks[k]()
    a.e(f"v_add_u32 v{X}, 0x10000, v{V_RA}")
    a.e("s_nop 7")
    a.e("s_barrier")
    for t in range(4):
        for g in range(4):
            a.e(f"ds_write_b128 v{V_PW}, v[{ACA+t*16+4*g}:{ACA+t*16+4*g+3}] offset:{t*4096 + g*1024}")
    a.e("s_waitcnt lgkmcnt(0)")
    a.e("s_barrier")
    dst = ACA
    for w in range(8):
        for g in range(2):
            r = dst + w * 8 + 4 * g
            a.e(f"ds_read_b128 v[{r}:{r+3}], v{V_RA if w < 4 else X} offset:{(w & 3) * 16384 + g * 1024}")
    a.e("s_waitcnt lgkmcnt(0)")
    for st in (32, 16, 8):
        for r in range(st): a.e(f"v_add_f32 v{dst+r}, v{dst+r}, v{dst+st+r}")
    for r in range(0, 8, 2):
        a.e(f"v_cvt_pk_bf16_f32 v{CF0+r}, v{dst+r}, v{dst+r+1}")
        a.e(f"v_and_b32 v{CF0+r+1}, 0xffff0000, v{CF0+r}")
        a.e(f"v_lshlrev_b32 v{CF0+r}, 16, v{CF0+r}")
    for r in range(8):
        if (r & 3) == 0: a.e(f"s_add_u32 s{S_U0}, s{S_OB}, {8 * (r >> 2) * 4096}")
        else: a.e(f"s_add_u32 s{S_U0}, s{S_U0}, 4096")
        a.e(f"buffer_store_dword v{CF0+r}, v{V_OO}, s[{SRD_OUT}:{SRD_OUT+3}], s{S_U0} offen")
    rt_end(a, 90, 2, SRD_WS, S_WAVE)
    a.label("K3_exit")
    a.e("s_endpgm")
    return kernel_wrap("k3_kernel", a.text(), 256, 256)
```

```python
import sys, os
sys.path.insert(0, os.path.dirname(__file__))
from common import *
import k1
k1.DIAG = bool(os.environ.get('DIAG'))
k1.LATER_CODE = (len(sys.argv) <= 2)
parts = []
launch = []
which = sys.argv[2].split(",") if len(sys.argv) > 2 else ["k1", "k2", "k3"]
if "k1" in which:
    launch.append("; @launch kernel=k1_kernel grid=(256,1,1) block=(256,1,1) lds=%d" % k1.LDS_BYTES)
    parts.append(k1.gen_k1())
if "k2" in which:
    import k2b as k2
    if os.environ.get('K2C', '1') == '1':
        import k2c as k2
    k2.DIAG = bool(os.environ.get('DIAG2'))
    launch.append("; @launch kernel=k2_kernel grid=(256,1,1) block=(512,1,1) lds=163840")
    parts.append(k2.gen_k2())
if "k3" in which:
    import k3
    if os.environ.get('K3B', '1') == '1':
        import k3b as k3
    k3.DIAG = bool(os.environ.get('DIAG3'))
    launch.append(k3.LAUNCH)
    parts.append(k3.gen_k3())
hdr = open("concat_heads__compressed_kv_cla__ssm_conv_s5__prompt.s.ref").read().split("; Override launch")[0]
out = hdr + "\n".join(launch) + '\n.amdgcn_target "amdgcn-amd-amdhsa--gfx950"\n' + "\n".join(parts)
open(sys.argv[1], "w").write(out)
print("wrote", sys.argv[1], len(out), "bytes")
```

```python
KF_OFF  = 0
VF_OFF  = 16 << 20
CTX_OFF = 32 << 20
BU_OFF  = 48 << 20
E32_OFF = 56 << 20
TAB_OFF = 57 << 20
HF_OFF  = 58 << 20

KA = dict(A_x=0, A_c_kv=8, A_w_q=16, A_w_uk=24, A_w_uv=32, A_w_o=40, B_x=48, B_Lre=56, B_Lim=64,
          B_Bre=72, B_Bim=80, B_Cre=88, B_Cim=96, B_logdt=104, B_Dskip=112, out=120, dbg=128, ws=136)

def vr(b, n=1):
    return f"v{b}" if n == 1 else f"v[{b}:{b+n-1}]"
def ar(b, n=1):
    return f"a{b}" if n == 1 else f"a[{b}:{b+n-1}]"
def sr(b, n=1):
    return f"s{b}" if n == 1 else f"s[{b}:{b+n-1}]"

class Asm:
    def __init__(self):
        self.lines = []
        self.vmq = []
        self.lgq = []
        self.uid = 0
    def e(self, s):
        self.lines.append("  " + s)
    def label(self, s):
        self.lines.append(s + ":")
    def comment(self, s):
        self.lines.append("  ; " + s)
    def vm(self, s, tag=None):
        self.e(s); self.vmq.append(tag)
    def ds(self, s, tag=None):
        self.e(s); self.lgq.append(tag)
    def _cnt(self, q, tag):
        idx = None
        for i, t in enumerate(q):
            if t == tag: idx = i
        if idx is None: return None
        return len(q) - 1 - idx
    def wait(self, vm=None, lg=None):
        parts = []
        if vm is not None:
            tags = vm if isinstance(vm, (list, tuple)) and not isinstance(vm, str) and (len(vm) == 0 or isinstance(vm[0], (tuple, str))) and isinstance(vm, list) else [vm]
            ns = [self._cnt(self.vmq, t) for t in tags]
            ns = [n for n in ns if n is not None]
            if ns:
                n = min(ns)
                self.vmq = self.vmq[len(self.vmq) - n:] if n > 0 else []
                parts.append(f"vmcnt({min(n, 63)})")
        if lg is not None:
            tags = lg if isinstance(lg, list) else [lg]
            ns = [self._cnt(self.lgq, t) for t in tags]
            ns = [n for n in ns if n is not None]
            if ns:
                n = min(ns)
                self.lgq = self.lgq[len(self.lgq) - n:] if n > 0 else []
                parts.append(f"lgkmcnt({min(n, 15)})")
        if parts:
            self.e("s_waitcnt " + " ".join(parts))
    def wait_all(self, vm=True, lg=True):
        parts = []
        if vm: parts.append("vmcnt(0)"); self.vmq = []
        if lg: parts.append("lgkmcnt(0)"); self.lgq = []
        self.e("s_waitcnt " + " ".join(parts))
    def newlabel(self, p="L"):
        self.uid += 1
        return f"{p}_{self.uid}"
    def text(self):
        return "\n".join(self.lines) + "\n"

def srd(a, s, base_lo, base_hi, nbytes):
    a.e(f"s_mov_b32 s{s}, s{base_lo}")
    a.e(f"s_and_b32 s{s+1}, s{base_hi}, 0xffff")
    a.e(f"s_mov_b32 s{s+2}, {nbytes}")
    a.e(f"s_mov_b32 s{s+3}, 0x00020000")

def srd_off(a, s, base_lo, base_hi, off, nbytes):
    a.e(f"s_add_u32 s{s}, s{base_lo}, {off}")
    a.e(f"s_addc_u32 s{s+1}, s{base_hi}, 0")
    a.e(f"s_and_b32 s{s+1}, s{s+1}, 0xffff")
    a.e(f"s_mov_b32 s{s+2}, {nbytes}")
    a.e(f"s_mov_b32 s{s+3}, 0x00020000")

def kernel_wrap(name, body, vgpr, accum, sgpr=102):
    return f"""
.text
.globl {name}
.p2align 8
.type {name},@function
{name}:
{body}
.section .rodata,"a"
.p2align 6
.amdhsa_kernel {name}
  .amdhsa_next_free_vgpr {vgpr}
  .amdhsa_next_free_sgpr {sgpr}
  .amdhsa_accum_offset {accum}
  .amdhsa_group_segment_fixed_size 0
  .amdhsa_kernarg_size 144
  .amdhsa_user_sgpr_count 2
  .amdhsa_user_sgpr_kernarg_segment_ptr 1
  .amdhsa_system_sgpr_workgroup_id_x 1
.end_amdhsa_kernel
"""

def mfma(d, a_, b_, c):
    return f"v_mfma_f32_32x32x16_bf16 {d}, {a_}, {b_}, {c}"


class Rec:
    def __init__(self): self.q = []
    def e(self, s): self.q.append(('e', s, None))
    def vm(self, s, tag=None): self.q.append(('vm', s, tag))
    def ds(self, s, tag=None): self.q.append(('ds', s, tag))
    def wait(self, vm=None, lg=None): self.q.append(('wait', vm, lg))
    def glue(self): self.q.append(('glue', None, None))
    def __len__(self): return len(self.q)
    def pop(self, a):
        while self.q:
            k, x, y = self.q.pop(0)
            if k == 'wait': a.wait(vm=x, lg=y); continue
            if k == 'glue': continue
            if k == 'e': a.e(x)
            elif k == 'vm': a.vm(x, y)
            elif k == 'ds': a.ds(x, y)
            if self.q and self.q[0][0] == 'glue': continue
            break

import os
RT = bool(os.environ.get('RT'))
def rt_start(a, s):
    if not RT: return
    a.e(f"s_memrealtime s[{s}:{s+1}]")
    a.e("s_waitcnt lgkmcnt(0)")
def rt_end(a, s, kidx, srd_ws, swave):
    if not RT: return
    a.e("s_waitcnt vmcnt(0) lgkmcnt(0)")
    a.e("s_memrealtime s[6:7]")
    a.e("s_waitcnt lgkmcnt(0)")
    a.e(f"v_mov_b32 v0, s{s}")
    a.e("v_mov_b32 v1, s6")
    a.e("s_lshl_b32 s6, s2, 3")
    a.e(f"s_add_u32 s6, s6, s{swave}")
    a.e("s_lshl_b32 s6, s6, 3")
    a.e(f"s_add_u32 s6, s6, {(62 << 20) + kidx * 65536}")
    a.e("v_mov_b32 v2, 0")
    a.e(f"buffer_store_dwordx2 v[0:1], v2, s[{srd_ws}:{srd_ws+3}], s6 offen")

def rt_mark(a, idx, v1, st):
    if not RT: return
    a.e("s_memrealtime s[0:1]")
    a.e("s_waitcnt lgkmcnt(0)")
    a.e(f"v_mov_b32 v{v1}, s0")
    a.e(f"v_mov_b32 v{v1+1}, 0")
    a.e(f"s_lshl_b32 s{st}, s2, 3")
    a.e(f"s_add_u32 s{st}, s{st}, s3")
    a.e(f"s_lshl_b32 s{st}, s{st}, 6")
    a.e(f"s_add_u32 s{st}, s{st}, {(62 << 20) + idx * 4}")
    a.vm(f"buffer_store_dword v{v1}, v{v1+1}, s[64:67], s{st} offen", 'rt')

def code_prefetch(a, l_start, l_end, nbytes_est, nwaves, swave, v_lane16, vt, vd, st):
    a.e(f"s_getpc_b64 s[{st}:{st+1}]")
    a.label(l_start)
    a.e(f"s_lshl_b32 s{st+2}, s{swave}, 10")
    a.e(f"v_add_u32 v{vt}, s{st+2}, v{v_lane16}")
    n = -(-nbytes_est // (1024 * nwaves))
    for i in range(n):
        a.e(f"v_min_u32 v{vt+1}, {l_end}-{l_start}-16, v{vt}")
        a.vm(f"global_load_dwordx4 v[{vd}:{vd+3}], v{vt+1}, s[{st}:{st+1}]", 'pf')
        if i + 1 < n: a.e(f"v_add_u32 v{vt}, {1024 * nwaves}, v{vt}")
```

```python
from common import *
import struct

S_WAVE, S_MB, S_U = 3, 4, 5
S_T0, S_T1, S_T2, S_T3 = 6, 7, 8, 9
S_PBL = [10, 11, 12, 13, 97]
P = dict(A_x=16, ckv=18, wq=20, wuk=22, wuv=24, wo=26, Bx=28, Lre=30, Lim=32, Bre=34, Bim=36, Cre=38, Cim=40,
         logdt=42, Dskip=44, out=46, dbg=48, ws=50)
SRD_A, SRD_W, SRD_BR, SRD_O, SRD_A2, SRD_L0, SRD_L1, SRD_L2, SRD_BI = 52, 56, 60, 64, 68, 72, 76, 80, 44
S_UO = 84
S_CU0 = 95
S_UST = 94
S_U9 = 95
S_ROT = 14
S_T4 = 15
S_AB = 100
S_AL = 101

LOG2E = 1.4426950408889634
INV2PI = 0.15915494309189535
def f2u(x):
    return "0x%08x" % struct.unpack("<I", struct.pack("<f", x))[0]

FR0 = 192
NF = 8
TMP = 224
RING = 5
LDS_AST = RING * 16384
LDS_TAB = LDS_AST + 65536
LDS_BYTES = 163840
DIAG = False
import os
ABL = os.environ.get('ABL', '')
STF = os.environ.get('STF1', 'sc1')
L16 = os.environ.get('L16', '1') == '1'
CPF = os.environ.get('CPF', '1') == '1'
LATER_CODE = True
NBK = int(os.environ.get('NBK', '2'))
DIAG_OFF = 63 << 20

def m16(d, a_, b_, c):
    return f"v_mfma_f32_16x16x32_bf16 {d}, {a_}, {b_}, {c}"

class Proxy:
    def __init__(self, t): self.__dict__['t'] = t
    def __getattr__(self, k): return getattr(self.__dict__['t'], k)
    def __setattr__(self, k, v):
        if k == 't': self.__dict__['t'] = v
        else: setattr(self.__dict__['t'], k, v)

SRD_PF = 72
def gen_type(A, typ):
    a = Proxy(A)
    urgent = Rec(); lazy = Rec()
    def rec(q, f, *args):
        a.t = q; f(*args); a.t = A
    def ensure(tag):
        for q in (urgent, lazy):
            while any(k in ('vm', 'ds') and y == tag for k, x, y in q.q):
                q.pop(A)
    isS = typ.startswith("S")
    kv = typ[0] if not isS else 'K'
    if not isS:
        phases = [(kv, 2, 0, 0), (kv, 2, 2, 64), (kv, 2, 4, 0), (kv, 2, 6, 64), (kv, 2, 8, 0)]
    else:
        phases = [('S', 2, 0, 0), ('S', 2, 2, 64), ('S', 2, 4, 0)]
    LASTS = 99
    T = TMP
    if not isS:
        V_TR = [[240, 241], [242, 243]]; V_DQ = [244, 245, 246, 247]; V_OO = [128, 129, 130, 131]; V_SQ = [250, 251]; V_AR = [252, 253]
    else:
        V_SR = [[[240, 241], [242, 243]], [[244, 245], [246, 247]]]
        V_SQ = [248, 249]; V_AR = [250, 251]
        V_TR = [[128, 129], [130, 131]]; V_DQ = [132, 133, 134, 135]; V_OO = [136, 137]
        V_BO = T + 12; V_EO = T + 13; V_CT = T + 14
    def lane_id(r):
        a.e(f"v_mbcnt_lo_u32_b32 v{r}, -1, 0")
        a.e(f"v_mbcnt_hi_u32_b32 v{r}, -1, v{r}")
    def setup_kv_regs(L, X, Y):
        lane_id(L)
        a.e(f"v_lshrrev_b32 v{X}, 4, v{L}")
        a.e(f"v_lshlrev_b32 v{V_TR[0][0]}, 9, v{X}")
        a.e(f"v_bfe_u32 v{Y}, v{L}, 2, 2")
        a.e(f"v_lshl_add_u32 v{V_TR[0][0]}, v{Y}, 6, v{V_TR[0][0]}")
        a.e(f"v_and_b32 v{Y}, 3, v{L}")
        a.e(f"v_lshl_add_u32 v{V_TR[0][0]}, v{Y}, 3, v{V_TR[0][0]}")
        a.e(f"v_and_b32 v{X}, 1, v{X}")
        a.e(f"v_lshl_add_u32 v{V_TR[0][0]}, v{X}, 5, v{V_TR[0][0]}")
        a.e(f"v_xor_b32 v{V_TR[0][1]}, 32, v{V_TR[0][0]}")
        a.e(f"v_add_u32 v{V_TR[1][0]}, 0x10000, v{V_TR[0][0]}")
        a.e(f"v_add_u32 v{V_TR[1][1]}, 0x10000, v{V_TR[0][1]}")
        a.e(f"v_lshrrev_b32 v{X}, 5, v{L}")
        a.e(f"v_lshlrev_b32 v{X}, 1, v{X}")
        a.e(f"v_xor_b32 v{Y}, v{X}, v{Y}")
        a.e(f"v_lshlrev_b32 v{V_DQ[0]}, 4, v{Y}")
        a.e(f"v_lshrrev_b32 v{X}, 2, v{L}")
        a.e(f"v_lshl_add_u32 v{V_DQ[0]}, v{X}, 13, v{V_DQ[0]}")
        for q in range(1, 4):
            a.e(f"v_add_u32 v{V_DQ[q]}, {16*q*8192 - 1024*q}, v{V_DQ[0]}")
        if L16:
            a.e(f"v_lshlrev_b32 v{X}, 4, v{L}")
        else:
            FS = 1024 if kv == 'K' else 4096
            a.e(f"v_and_b32 v{X}, 15, v{L}")
            a.e(f"v_lshlrev_b32 v{X}, 4, v{X}")
            a.e(f"v_bfe_u32 v{Y}, v{L}, 4, 1")
            a.e(f"v_lshl_add_u32 v{X}, v{Y}, 9, v{X}")
            a.e(f"v_lshrrev_b32 v{Y}, 5, v{L}")
            a.e(f"v_lshl_add_u32 v{X}, v{Y}, {FS.bit_length()-1}, v{X}")
        a.e(f"s_lshl_b32 s{S_T0}, s{S_MB}, 16")
        a.e(f"s_lshl_b32 s{S_T1}, s{S_WAVE}, 14")
        a.e(f"s_add_u32 s{S_T0}, s{S_T0}, s{S_T1}")
        a.e(f"v_add_u32 v{V_OO[0]}, s{S_T0}, v{X}")
        for i in range(1, 4): a.e(f"v_add_u32 v{V_OO[i]}, {4096*i}, v{V_OO[0]}")

    L = T + 15; X = T + 10; Y = T + 11
    a.e(f"v_and_b32 v{L}, 63, v0")
    if CPF:
        a.e(f"v_lshlrev_b32 v140, 4, v{L}")
        code_prefetch(a, f"K1c_{typ}", f"K1e_{typ}", 23552 if not isS else 18432, 4, S_WAVE, 140, 142, 144, 76)
    a.e(f"v_lshrrev_b32 v{T}, 3, v{L}")
    a.e(f"v_and_b32 v{T+1}, 7, v{L}")
    for q in range(2):
        a.e(f"v_add_u32 v{T+2}, {8*q}, v{T}")
        a.e(f"v_bfe_u32 v{T+3}, v{T+2}, 1, 3")
        a.e(f"v_xor_b32 v{T+3}, v{T+3}, v{T+1}")
        a.e(f"v_lshlrev_b32 v{T+3}, 4, v{T+3}")
        a.e(f"v_lshl_add_u32 v{T+3}, v{T+2}, 10, v{T+3}")
        a.e(f"v_subrev_u32 v{V_SQ[q]}, {1024*q}, v{T+3}")
    a.e(f"s_lshl_b32 s{S_T0}, s{S_MB}, 18")
    a.e(f"s_lshl_b32 s{S_T1}, s{S_WAVE}, 16")
    a.e(f"s_add_u32 s{S_AB}, s{S_T0}, s{S_T1}")
    NBUF = 2 if isS else NBK
    RNG = RING if isS else (5 if NBK == 2 else 4)
    a.e(f"s_mul_i32 s{S_AL}, s{S_WAVE}, {NBUF * 8192}")
    a.e(f"s_add_u32 s{S_AL}, s{S_AL}, {RNG * 16384}")
    a.e(f"v_and_b32 v{X}, 15, v{L}")
    a.e(f"v_lshlrev_b32 v{T}, 7, v{X}")
    a.e(f"v_bfe_u32 v{T+1}, v{L}, 1, 3")
    a.e(f"v_lshrrev_b32 v{T+2}, 4, v{L}")
    a.e(f"v_xor_b32 v{T+1}, v{T+1}, v{T+2}")
    a.e(f"v_lshl_add_u32 v{T+4}, v{T+1}, 4, v{T}")
    a.e(f"v_add_u32 v{V_AR[0]}, s{S_AL}, v{T+4}")
    a.e(f"v_xor_b32 v{V_AR[1]}, 64, v{V_AR[0]}")
    if isS:
        a.e(f"v_mov_b32 v{V_SR[0][0][0]}, v{T+4}")
    wp = P['wuk'] if kv == 'K' else P['wuv']
    srd(a, SRD_W, wp, wp + 1, 512 * 4096 * 2)
    a.e(f"s_lshl_b32 s{S_T3}, s{S_WAVE}, 12")
    if not isS:
        srd(a, SRD_A, P['ckv'], P['ckv'] + 1, 2048 * 512 * 2)
        if kv == 'V':
            a.e(f"s_sub_u32 s{S_UST}, s{S_U}, 13")
            a.e(f"s_mul_i32 s{S_UST}, s{S_UST}, 10")
        else:
            a.e(f"s_mul_i32 s{S_UST}, s{S_U}, 10")
        a.e(f"s_min_u32 s{S_UST}, s{S_UST}, 118")
        unit_expr = [(S_UST, i) for i in range(10)]
    else:
        srd(a, SRD_A, P['Bx'], P['Bx'] + 1, 2048 * 512 * 2)
        srd(a, SRD_BR, P['Bre'], P['Bre'] + 1, 512 * 512 * 2)
        srd(a, SRD_BI, P['Bim'], P['Bim'] + 1, 512 * 512 * 2)
        a.e(f"s_sub_u32 s{S_CU0}, s{S_U}, 26")
        a.e(f"s_mul_i32 s{S_CU0}, s{S_CU0}, 6")
        a.e(f"s_min_u32 s{S_CU0}, s{S_CU0}, 26")
        unit_expr = []
    for pi, (kind, wd, u0, ab) in enumerate(phases):
        d = S_PBL[pi]
        a.e(f"s_and_b32 s{S_T1}, s{S_WAVE}, {wd-1}")
        if kind != 'S':
            sreg, off = unit_expr[u0]
            a.e(f"s_add_u32 s{S_T1}, s{S_T1}, s{sreg}")
            if off: a.e(f"s_add_u32 s{S_T1}, s{S_T1}, {off}")
            a.e(f"s_lshl_b32 s{d}, s{S_T1}, 6")
        else:
            a.e(f"s_add_u32 s{S_T1}, s{S_T1}, s{S_CU0}")
            if u0: a.e(f"s_add_u32 s{S_T1}, s{S_T1}, {u0}")
            a.e(f"s_lshl_b32 s{d}, s{S_T1}, 14")
    if not isS: setup_kv_regs(L, X, Y)

    nst = [0]
    VST = 254
    def stamp():
        if not DIAG: return
        if nst[0] > 0:
            a.e("s_waitcnt lgkmcnt(0)"); a.lgq = []
            a.e(f"v_writelane_b32 v{VST}, s98, {nst[0]-1}")
        a.e("s_memtime s[98:99]")
        nst[0] += 1
    def stamp_end():
        if not DIAG: return
        stamp()
        a.e("s_waitcnt vmcnt(0)")
        stamp()
        a.e("s_waitcnt lgkmcnt(0)")
        a.e(f"v_writelane_b32 v{VST}, s98, {nst[0]-1}")
        lane_id(0)
        a.e("v_lshlrev_b32 v0, 2, v0")
        a.e(f"s_lshl_b32 s6, s2, 2")
        a.e(f"s_add_u32 s6, s6, s{S_WAVE}")
        a.e(f"s_lshl_b32 s6, s6, 8")
        a.e(f"s_add_u32 s6, s6, {DIAG_OFF}")
        a.e(f"buffer_store_dword v{VST}, v0, s[{SRD_O}:{SRD_O+3}], s6 offen")
    stamp()

    slots = []
    for pi, (kind, wd, u0, ab) in enumerate(phases):
        for sl in range(2 * wd):
            slots.append((pi, sl))
    NS = len(slots); R = RNG
    def issue_dma(n):
        pi, sl = slots[n]
        kind, wd, u0, ab = phases[pi]
        base = (n % R) * 16384
        lg = {4: 2, 2: 1, 1: 0}[wd]
        a.e(f"s_lshr_b32 s{S_T0}, s{S_WAVE}, {lg}")
        a.e(f"s_add_u32 s{S_T0}, s{S_T0}, s{S_ROT}")
        a.e(f"s_add_u32 s{S_T0}, s{S_T0}, {sl * (4 // wd)}")
        a.e(f"s_and_b32 s{S_T0}, s{S_T0}, 7")
        a.e(f"s_lshl_b32 s{S_T0}, s{S_T0}, {19 if kind != 'S' else 7}")
        a.e(f"s_add_u32 m0, s{S_T3}, {base}")
        a.e(f"s_add_u32 s{S_T0}, s{S_T0}, s{S_PBL[pi]}")
        for q in range(4):
            if kind == 'S':
                sd = SRD_BR if q < 2 else SRD_BI; vq = V_SQ[q & 1]; io = 1024 * (q & 1)
                if q == 2:
                    a.e(f"s_add_u32 m0, s{S_T3}, {base + 2048}")
                    a.e("s_nop 0")
            else:
                sd = SRD_W; vq = V_DQ[q]; io = 1024 * q
            a.vm(f"buffer_load_dwordx4 v{vq}, s[{sd}:{sd+3}], s{S_T0} offen offset:{io} lds", ('dma', n))
    def a_dma(c, sdA, tagp):
        a.e(f"s_add_u32 s{S_T4}, s{S_ROT}, {c}")
        a.e(f"s_and_b32 s{S_T4}, s{S_T4}, 7")
        a.e(f"s_lshl_b32 s{S_T4}, s{S_T4}, 7")
        a.e(f"s_add_u32 s{S_T4}, s{S_T4}, s{S_AB}")
        for qq in range(4):
            a.e(f"s_add_u32 m0, s{S_AL}, {(c % NBUF) * 8192 + qq * 2048}")
            if qq: a.e(f"s_add_u32 s{S_T4}, s{S_T4}, 16384")
            else: a.e("s_nop 0")
            for q in range(2):
                a.vm(f"buffer_load_dwordx4 v{V_SQ[q]}, s[{sdA}:{sdA+3}], s{S_T4} offen offset:{1024*q} lds", (tagp, c))
    def a_read(c, tagp):
        a.wait(vm=(tagp, c))
        for up in range(2):
            for mt in range(4):
                r = ((2 * c + up) * 4 + mt) * 4
                a.ds(f"ds_read_b128 a[{r}:{r+3}], v{V_AR[up]} offset:{(c % NBUF) * 8192 + mt * 2048}", (tagp + 'r', c))

    if isS:
        srd(a, SRD_L0, P['Lre'], P['Lre'] + 1, 1024)
        srd(a, SRD_L1, P['Lim'], P['Lim'] + 1, 1024)
        srd(a, SRD_L2, P['logdt'], P['logdt'] + 1, 1024)
        r0 = T + 6
        a.e(f"s_and_b32 s{S_T0}, s{S_WAVE}, 1")
        a.e(f"s_lshl_b32 s{S_T0}, s{S_T0}, 6")
        a.e(f"s_lshl_b32 s{S_T1}, s{S_CU0}, 4")
        a.e(f"s_add_u32 s{S_T1}, s{S_T1}, s{S_T0}")
        a.e(f"s_lshl_b32 s{S_T2}, s{S_T1}, 1")
        a.e(f"v_lshlrev_b32 v{r0+3}, 1, v{L}")
        a.vm(f"buffer_load_ushort v{r0}, v{r0+3}, s[{SRD_L0}:{SRD_L0+3}], s{S_T2} offen", 'par')
        a.vm(f"buffer_load_ushort v{r0+1}, v{r0+3}, s[{SRD_L1}:{SRD_L1+3}], s{S_T2} offen", 'par')
        a.vm(f"buffer_load_ushort v{r0+2}, v{r0+3}, s[{SRD_L2}:{SRD_L2+3}], s{S_T2} offen", 'par')
    issue_dma(0)
    a_dma(0, SRD_A, 'A')
    a_dma(1, SRD_A, 'A')
    issue_dma(1)
    if NBUF == 3: a_dma(2, SRD_A, 'A')
    dma_next = 2
    srd(a, SRD_O, P['ws'], P['ws'] + 1, 64 << 20)
    obase = KF_OFF if kv == 'K' else VF_OFF
    osh = (10 if kv == 'K' else 11) if L16 else (11 if kv == 'K' else 10)
    for i, (sreg, off) in enumerate(unit_expr):
        a.e(f"s_add_u32 s{S_T0}, s{sreg}, {off}")
        a.e(f"s_lshr_b32 s{S_T1}, s{S_T0}, 2")
        a.e(f"s_lshl_b32 s{S_T1}, s{S_T1}, 19")
        a.e(f"s_and_b32 s{S_T0}, s{S_T0}, 3")
        a.e(f"s_lshl_b32 s{S_T0}, s{S_T0}, {osh}")
        a.e(f"s_add_u32 s{S_T0}, s{S_T0}, s{S_T1}")
        a.e(f"s_add_u32 s{S_UO+i}, s{S_T0}, {obase}")

    def s_pow(n, ra, rb, rd, rt):
        a.e(f"v_mul_f32 v{rt}, {f2u(float(n))}, v{ra}")
        a.e(f"v_mul_f32 v{rd+1}, {f2u(float(n))}, v{rb}")
        a.e(f"v_exp_f32 v{rt}, v{rt}")
        a.e(f"v_fract_f32 v{rd+1}, v{rd+1}")
        a.e(f"v_cos_f32 v{rd}, v{rd+1}")
        a.e(f"v_sin_f32 v{rd+1}, v{rd+1}")
        a.e("s_nop 0")
        a.e(f"v_mul_f32 v{rd}, v{rd}, v{rt}")
        a.e(f"v_mul_f32 v{rd+1}, v{rd+1}, v{rt}")

    if isS:
        a.e(f"v_and_b32 v{X}, 15, v{L}")
        a.e(f"v_xor_b32 v{V_SR[0][0][1]}, 64, v{V_SR[0][0][0]}")
        for up in range(2):
            a.e(f"v_add_u32 v{V_SR[0][1][up]}, 2048, v{V_SR[0][0][up]}")
        for t in range(2):
            for up in range(2):
                a.e(f"v_add_u32 v{V_SR[1][t][up]}, 0x10000, v{V_SR[0][t][up]}")
        a.e(f"s_lshl_b32 s{S_T0}, s{S_MB}, 3")
        a.e(f"s_lshl_b32 s{S_T1}, s{S_WAVE}, 1")
        a.e(f"s_add_u32 s{S_T0}, s{S_T0}, s{S_T1}")
        a.e(f"s_lshl_b32 s{S_T1}, s{S_T0}, 17")
        a.e(f"v_lshlrev_b32 v{V_BO}, 4, v{X}")
        a.e(f"v_bfe_u32 v{T+1}, v{L}, 4, 1")
        a.e(f"v_lshl_add_u32 v{V_BO}, v{T+1}, 9, v{V_BO}")
        a.e(f"v_lshrrev_b32 v{T+1}, 5, v{L}")
        a.e(f"v_lshl_add_u32 v{V_BO}, v{T+1}, 10, v{V_BO}")
        a.e(f"v_add_u32 v{V_BO}, s{S_T1}, v{V_BO}")
        a.e(f"s_lshl_b32 s{S_T1}, s{S_T0}, 12")
        a.e(f"v_lshlrev_b32 v{V_EO}, 3, v{X}")
        a.e(f"v_add_u32 v{V_EO}, s{S_T1}, v{V_EO}")
        a.e(f"v_lshlrev_b32 v{V_CT}, 3, v{X}")
        a.e(f"v_add_u32 v{V_CT}, {LDS_TAB}, v{V_CT}")
        r0 = T + 6
        a.e(f"s_and_b32 s{S_T0}, s{S_WAVE}, 1")
        a.e(f"s_lshl_b32 s{S_T0}, s{S_T0}, 6")
        a.e(f"s_lshl_b32 s{S_T1}, s{S_CU0}, 4")
        a.e(f"s_add_u32 s{S_T1}, s{S_T1}, s{S_T0}")
        a.e(f"s_lshl_b32 s{S_T2}, s{S_T1}, 3")
        a.e(f"s_add_u32 s{S_T2}, s{S_T2}, {TAB_OFF}")
        a.e(f"v_lshlrev_b32 v{Y}, 3, v{L}")
        YM = 138
        a.e(f"v_add_u32 v{YM}, s{S_T1}, v{L}")
        a.e(f"v_cmp_gt_u32 vcc, 512, v{YM}")
        a.e(f"v_mov_b32 v{YM}, 0x7f000000")
        a.e("s_nop 0")
        a.e(f"v_cndmask_b32 v{YM}, v{YM}, v{Y}, vcc")
        a.e(f"s_lshl_b32 s{S_T0}, s{S_T0}, 3")
        a.e(f"s_add_u32 s{S_T0}, s{S_T0}, {LDS_TAB}")
        a.e(f"v_add_u32 v{X}, s{S_T0}, v{Y}")
        a.wait(vm='par')
        a.e(f"v_lshlrev_b32 v{r0}, 16, v{r0}")
        a.e(f"v_lshlrev_b32 v{r0+1}, 16, v{r0+1}")
        a.e(f"v_lshlrev_b32 v{r0+2}, 16, v{r0+2}")
        a.e(f"v_mul_f32 v{r0+2}, {f2u(LOG2E)}, v{r0+2}")
        a.e(f"v_exp_f32 v{r0+2}, v{r0+2}")
        a.e("s_nop 0")
        a.e(f"v_cvt_pk_bf16_f32 v{r0+2}, v{r0+2}, v{r0+2}")
        a.e(f"v_lshlrev_b32 v{r0+3}, 16, v{r0+2}")
        a.e(f"v_mul_f32 v{r0+2}, v{r0+3}, v{r0}")
        a.e(f"v_mul_f32 v{r0+3}, v{r0+3}, v{r0+1}")
        a.e(f"v_mul_f32 v{r0+2}, {f2u(LOG2E)}, v{r0+2}")
        a.e(f"v_mul_f32 v{r0+3}, {f2u(INV2PI)}, v{r0+3}")
        lb = a.newlabel("K1tb"); le = a.newlabel("K1te")
        a.e(f"s_cmp_ge_u32 s{S_WAVE}, 2")
        a.e(f"s_cbranch_scc1 {lb}")
        vq0 = list(a.vmq); lq0 = list(a.lgq)
        def gst(kidx, rd):
            a.e(f"s_add_u32 s{S_T1}, s{S_T2}, {kidx*4096}")
            a.e(f"buffer_store_dwordx2 v[{rd}:{rd+1}], v{T+5 if False else YM}, s[{SRD_O}:{SRD_O+3}], s{S_T1} offen")
        s_pow(1, r0 + 2, r0 + 3, T, T + 4)
        a.e(f"ds_write_b64 v{X}, v[{T}:{T+1}]")
        gst(0, T)
        a.e(f"v_mul_f32 v{T+4}, v{r0}, v{r0}")
        a.e(f"v_fmac_f32 v{T+4}, v{r0+1}, v{r0+1}")
        a.e(f"v_rcp_f32 v{T+4}, v{T+4}")
        a.e(f"v_add_f32 v{T+5}, -1.0, v{T}")
        a.e(f"v_add_f32 v{T+4}, v{T+4}, v{T+4}")
        a.e(f"v_mul_f32 v{T+2}, v{T+5}, v{r0}")
        a.e(f"v_fmac_f32 v{T+2}, v{T+1}, v{r0+1}")
        a.e(f"v_mul_f32 v{T+3}, v{T+1}, v{r0}")
        a.e(f"v_fma_f32 v{T+3}, -v{T+5}, v{r0+1}, v{T+3}")
        a.e(f"v_mul_f32 v{T+2}, v{T+2}, v{T+4}")
        a.e(f"v_mul_f32 v{T+3}, v{T+3}, v{T+4}")
        gst(6, T + 2)
        s_pow(16, r0 + 2, r0 + 3, T, T + 4)
        a.e(f"ds_write_b64 v{X}, v[{T}:{T+1}] offset:1024")
        s_pow(12, r0 + 2, r0 + 3, T + 2, T + 4)
        a.e(f"ds_write_b64 v{X}, v[{T+2}:{T+3}] offset:2048")
        s_pow(8, r0 + 2, r0 + 3, T, T + 4)
        a.e(f"ds_write_b64 v{X}, v[{T}:{T+1}] offset:3072")
        gst(1, T)
        s_pow(4, r0 + 2, r0 + 3, T + 2, T + 4)
        a.e(f"ds_write_b64 v{X}, v[{T+2}:{T+3}] offset:4096")
        a.e(f"v_mov_b32 v{T+4}, 1.0")
        a.e(f"v_mov_b32 v{T+5}, 0")
        a.e(f"ds_write_b64 v{X}, v[{T+4}:{T+5}] offset:5120")
        gst(1, T)
        a.e("s_waitcnt lgkmcnt(0)")
        a.e(f"s_branch {le}")
        a.label(lb)
        for kidx, n in [(2, 32), (3, 512), (4, 1024), (5, 1536)]:
            rd = T if kidx % 2 == 0 else T + 2
            s_pow(n, r0 + 2, r0 + 3, rd, T + 4)
            gst(kidx, rd)
        a.label(le)
        a.vmq += ['tab'] * 4
        a.e(f"v_lshrrev_b32 v{L}, 4, v{L}")
        a.e(f"v_lshl_add_u32 v{L}, v{L}, 10, v{V_CT}")

    tmpi = [0]
    def acc_of(ab, u, t, mt):
        return ab + u * 32 + (t * 4 + mt) * 4
    def kv_unit_items(kind, ab, u, uidx):
        items = []
        for kt in range(2):
            for x in range(2):
                def f(kt=kt, x=x):
                    t = T + 4 * (tmpi[0] % 3); tmpi[0] += 1
                    if kind == 'K':
                        mt = 2 * kt + x
                        r1, r2 = acc_of(ab, u, 0, mt), acc_of(ab, u, 1, mt)
                    else:
                        r1, r2 = acc_of(ab, u, x, 2 * kt), acc_of(ab, u, x, 2 * kt + 1)
                    a.e(f"v_cvt_pk_bf16_f32 v{t}, v{r1}, v{r1+1}")
                    a.e(f"v_cvt_pk_bf16_f32 v{t+1}, v{r1+2}, v{r1+3}")
                    a.e(f"v_cvt_pk_bf16_f32 v{t+2}, v{r2}, v{r2+1}")
                    a.e(f"v_cvt_pk_bf16_f32 v{t+3}, v{r2+2}, v{r2+3}")
                    if not L16: vo, io = V_OO[2 * kt], 256 * x
                    elif kind == 'K': vo, io = V_OO[2 * kt + x], 0
                    else: vo, io = V_OO[2 * kt], 1024 * x
                    a.vm(f"buffer_store_dwordx4 v[{t}:{t+3}], v{vo}, s[{SRD_O}:{SRD_O+3}], s{S_UO+uidx} offen offset:{io} {STF}", 'st')
                items.append(f)
        return items
    def cfma(d, x, l, b_re, b_im, t):
        a.e(f"v_fma_f32 v{t}, v{x}, v{l}, v{b_re}")
        a.e(f"v_fma_f32 v{t+1}, v{x}, v{l+1}, v{b_im}")
        a.e(f"v_fma_f32 v{d}, -v{x+1}, v{l+1}, v{t}")
        a.e(f"v_fma_f32 v{d+1}, v{x+1}, v{l}, v{t+1}")
    def s_unit_items(ab, u, ui):
        items = []
        G, AC, TT = T + 6, T + 8, T + 10
        def fc():
            a.ds(f"ds_read_b64 v[{T}:{T+1}], v{V_CT} offset:{ui*128}", ('ct', ui))
            a.ds(f"ds_read_b64 v[{T+4}:{T+5}], v{V_CT} offset:{1024+ui*128}", ('ct', ui))
            a.ds(f"ds_read_b64 v[{T+2}:{T+3}], v{T+15} offset:{2048+ui*128}", ('ct', ui))
        items.append(fc)
        def st(part):
            def f():
                a.e(f"s_add_u32 s{S_T2}, s{S_CU0}, {ui}")
                a.e(f"s_lshr_b32 s{S_T2}, s{S_T2}, 1")
                a.e(f"s_lshl_b32 s{S_T2}, s{S_T2}, 13")
                for kt in range(2):
                    a.e(f"s_add_u32 s{S_T1}, s{S_T2}, {BU_OFF + part*4096 + kt*131072 + (ui&1)*256}")
                    for x in range(2):
                        r = acc_of(ab, u, part, 2 * kt + x)
                        a.vm(f"buffer_store_dwordx4 v[{r}:{r+3}], v{V_BO}, s[{SRD_O}:{SRD_O+3}], s{S_T1} offen offset:{2048*x} {STF}", 'st')
            return f
        if 'nobu' not in ABL: items.append(st(0)); items.append(st(1))
        if 'noe32' in ABL: return items
        for kt in range(2):
            for x in range(2):
                R_ = acc_of(ab, u, 0, 2 * kt + x); I_ = acc_of(ab, u, 1, 2 * kt + x)
                D_ = AC if x == 0 else G
                def f1(R_=R_, I_=I_, D_=D_):
                    a.wait(lg=('ct', ui))
                    a.e(f"v_fma_f32 v{TT}, v{R_}, v{T}, v{R_+1}")
                    a.e(f"v_fma_f32 v{TT+1}, v{R_}, v{T+1}, v{I_+1}")
                    a.e(f"v_fma_f32 v{D_}, -v{I_}, v{T+1}, v{TT}")
                    a.e(f"v_fma_f32 v{D_+1}, v{I_}, v{T}, v{TT+1}")
                def f2(R_=R_, I_=I_, D_=D_):
                    cfma(D_, D_, T, R_ + 2, I_ + 2, TT)
                def f3(R_=R_, I_=I_, D_=D_):
                    cfma(D_, D_, T, R_ + 3, I_ + 3, TT)
                items += [f1, f2, f3]
            def f4():
                cfma(AC, AC, T + 4, G, G + 1, TT)
            def f5():
                a.e(f"v_mul_f32 v{TT}, v{AC}, v{T+2}")
                a.e(f"v_mul_f32 v{TT+1}, v{AC}, v{T+3}")
                a.e(f"v_fma_f32 v{G}, -v{AC+1}, v{T+3}, v{TT}")
                a.e(f"v_fma_f32 v{G+1}, v{AC+1}, v{T+2}, v{TT+1}")
                a.e(f"v_mov_b32 v{TT}, v{G}")
                a.e(f"v_mov_b32 v{TT+1}, v{G+1}")
                a.e("s_nop 1")
                a.e(f"v_permlane32_swap_b32 v{G}, v{TT}")
                a.e(f"v_permlane32_swap_b32 v{G+1}, v{TT+1}")
            def f6():
                a.e(f"v_add_f32 v{G}, v{G}, v{TT}")
                a.e(f"v_add_f32 v{G+1}, v{G+1}, v{TT+1}")
                a.e(f"v_mov_b32 v{TT}, v{G}")
                a.e(f"v_mov_b32 v{TT+1}, v{G+1}")
                a.e("s_nop 1")
                a.e(f"v_permlane16_swap_b32 v{G}, v{TT}")
                a.e(f"v_permlane16_swap_b32 v{G+1}, v{TT+1}")
            def f7(kt=kt):
                a.e(f"v_add_f32 v{G}, v{G}, v{TT}")
                a.e(f"v_add_f32 v{G+1}, v{G+1}, v{TT+1}")
                a.e(f"s_add_u32 s{S_T2}, s{S_CU0}, {ui}")
                a.e(f"s_lshl_b32 s{S_T2}, s{S_T2}, 7")
                a.e(f"s_add_u32 s{S_T2}, s{S_T2}, {E32_OFF + kt*4096}")
                a.vm(f"buffer_store_dwordx2 v[{G}:{G+1}], v{V_EO}, s[{SRD_O}:{SRD_O+3}], s{S_T2} offen", 'st')
            items += [f4, f5, f6, f7]
        return items
    def phase_epilogue_items(pi):
        kind, wd, u0, ab = phases[pi]
        items = []
        order = list(range(wd))
        for u in order:
            items += kv_unit_items(kind, ab, u, u0 + u) if kind != 'S' else s_unit_items(ab, u, u0 + u)
        return items

    ops = []; frags = []
    for pi, (kind, wd, u0, ab) in enumerate(phases):
        for s in range(16):
            for u in range(wd):
                for t in range(2):
                    fid = len(frags); frags.append((pi, s, u, t))
                    for mt in range(4):
                        ops.append((pi, s, u, t, mt, fid))
    slot_of = {}
    for n, key in enumerate(slots): slot_of[key] = n
    def frag_loc(fid):
        pi, s, u, t = frags[fid]
        kind, wd, u0, ab = phases[pi]
        kb = s >> 1; up = s & 1
        per = 4 // wd
        return slot_of[(pi, kb // per)], (kb % per) * wd + u, up, t, kind
    def issue_frag(fid):
        n, piece, up, t, kind = frag_loc(fid)
        r = FR0 + (fid % NF) * 4
        base = (n % R) * 16384 + piece * 4096
        hi = base >> 16; base &= 0xffff
        if kind == 'S':
            a.ds(f"ds_read_b128 v[{r}:{r+3}], v{V_SR[hi][t][up]} offset:{base}", ('f', fid))
        else:
            a.ds(f"ds_read_b64_tr_b16 v[{r}:{r+1}], v{V_TR[hi][t]} offset:{base + up*2048}", ('f', fid))
            a.ds(f"ds_read_b64_tr_b16 v[{r+2}:{r+3}], v{V_TR[hi][t]} offset:{base + up*2048 + 256}", ('f', fid))

    def prefetch(names):
        for nm, nbytes in names:
            per_wave = nbytes // 1024
            a.e(f"s_mov_b32 s{SRD_PF}, s{P[nm]}")
            a.e(f"s_and_b32 s{SRD_PF+1}, s{P[nm]+1}, 0xffff")
            a.e(f"s_mov_b32 s{SRD_PF+2}, {nbytes}")
            a.e(f"s_mov_b32 s{SRD_PF+3}, 0x00020000")
            a.e(f"s_lshl_b32 s{S_T2}, s2, 2")
            if per_wave >= 1024:
                a.e(f"s_add_u32 s{S_T2}, s{S_T2}, s{S_WAVE}")
                a.e(f"s_mul_i32 s{S_T2}, s{S_T2}, {per_wave}")
                n = per_wave // 1024
            else:
                a.e(f"s_and_b32 s{S_T1}, s{S_WAVE}, 2")
                a.e(f"s_add_u32 s{S_T2}, s{S_T2}, s{S_T1}")
                a.e(f"s_mul_i32 s{S_T2}, s{S_T2}, {per_wave}")
                n = 1
            for i in range(n):
                a.vm(f"buffer_load_dwordx4 v[{V_PFD}:{V_PFD+3}], v{V_PF}, s[{SRD_PF}:{SRD_PF+3}], s{S_T2} offen offset:{1024*i}", 'pf')
    V_PF = 140; V_PFD = 144
    def later_code():
        a.e(f"s_getpc_b64 s[76:77]"); a.glue()
        a.e(f"K1n_{typ}: s_add_u32 s76, s76, k2_kernel-K1n_{typ}"); a.glue()
        a.e(f"s_addc_u32 s77, s77, 0")
        a.e(f"s_lshl_b32 s{S_T2}, s2, 2")
        a.e(f"s_add_u32 s{S_T2}, s{S_T2}, s{S_WAVE}")
        a.e(f"s_lshl_b32 s{S_T2}, s{S_T2}, 10")
        a.e(f"v_add_u32 v142, s{S_T2}, v{V_PF}")
        a.e(f"v_min_u32 v142, K3e-k2_kernel-16, v142")
        a.vm(f"global_load_dwordx4 v[{V_PFD}:{V_PFD+3}], v142, s[76:77]", 'pf')
    lane_id(V_PF)
    a.e(f"v_lshlrev_b32 v{V_PF}, 4, v{V_PF}")
    MB = 1 << 20

    a_read(0, 'A')
    a.wait(vm=('dma', 0))
    a.e("s_barrier")
    a.wait(lg=('Ar', 0))
    a_dma(NBUF, SRD_A, 'A')
    landed = 0; fnext = 0; last_use_issued = -1; cur_slot = -1
    pend_b = None
    credit = 0.0
    for oi, (pi, s, u, t, mt, fid) in enumerate(ops):
        kind, wd, u0, ab = phases[pi]
        n = frag_loc(fid)[0]
        if n != cur_slot:
            cur_slot = n
            stamp()
            if n + 1 < NS:
                ensure(('dma', n + 1))
                a.wait(vm=('dma', n + 1))
            a.e("s_barrier")
            landed = n + 1
            slot_first = oi
        if s == 0 and u == 0 and t == 0 and mt == 0 and pi > 0:
            while len(lazy): lazy.pop(A)
            if pi == len(phases) - 1 and 'nopf' not in ABL:
                rec(lazy, prefetch, [('A_x', 2 * MB), ('wq', 4 * MB)])
                if CPF and LATER_CODE: rec(lazy, later_code)
            for it in phase_epilogue_items(pi - 1): rec(lazy, it)
            phase_first = oi
        def can_issue(f):
            return f < len(frags) and (f - NF) <= last_use_issued and frag_loc(f)[0] <= landed
        if oi == 0:
            while can_issue(fnext) and fnext < NF:
                issue_frag(fnext); fnext += 1
        if mt == 0:
            a.wait(lg=('f', fid))
        if u == 0 and t == 0 and mt == 0:
            if pi == 0: ensure(('Ar', s >> 1)); a.wait(lg=('Ar', s >> 1))
            elif isS and pi == LASTS + 1: ensure(('Br', s >> 1)); a.wait(lg=('Br', s >> 1))
        acc = acc_of(ab, u, t, mt)
        D = vr(acc, 4)
        C = "0" if s == 0 else D
        fr = vr(FR0 + (fid % NF) * 4, 4)
        af = ar((s * 4 + mt) * 4, 4)
        a.e(m16(D, fr, af, C) if kind == 'K' else m16(D, af, fr, C))
        if mt == 3:
            last_use_issued = fid
        budget = 2
        if mt in (1, 3) and can_issue(fnext):
            issue_frag(fnext); fnext += 1
            budget = 0 if frag_loc(fnext - 1)[4] != 'S' else 1
        rel = oi - slot_first
        if rel in (2, 34) and dma_next < NS and dma_next <= n + R - 1:
            rec(urgent, issue_dma, dma_next); dma_next += 1
        if pi == 0:
            c = s >> 1; relc = oi - c * 32
            if relc == 4 and c + 1 < 8:
                rec(urgent, a_read, c + 1, 'A')
            if relc == 16 and c + 1 + NBUF < 8:
                rec(urgent, lambda: (a.wait(lg=('Ar', c + 1)), a_dma(c + 1 + NBUF, SRD_A, 'A')))
        if isS and pi == LASTS - 1 and rel == 10 and n == slot_of[(pi, 2)]:
            rec(urgent, a_dma, 0, SRD_A2, 'B'); rec(urgent, a_dma, 1, SRD_A2, 'B')
        if isS and pi == LASTS and (s & 1) and u == wd - 1 and t == 1 and mt == 3:
            rec(urgent, a_read, s >> 1, 'B')
            if (s >> 1) + 2 < 8:
                cc = s >> 1
                rec(urgent, lambda: (a.e("s_nop 0"), a.e("s_nop 0"), a.e("s_nop 0"), a.e("s_nop 0"), a.wait(lg=('Br', cc)), a_dma(cc + 2, SRD_A2, 'B')))
        while budget and len(urgent):
            urgent.pop(A); budget -= 1
        if len(lazy) and pi > 0 and oi - phase_first >= 6:
            rem_ops = sum(1 for o in ops[oi + 1:] if o[0] == pi) - 8
            credit += len(lazy) / max(rem_ops * 0.5, 1)
            while budget and credit >= 1 and len(lazy):
                lazy.pop(A); budget -= 1; credit -= 1
            credit = min(credit, 2.0)
    while len(urgent): urgent.pop(A)
    while len(lazy): lazy.pop(A)
    a.e("s_nop 15")
    for it in phase_epilogue_items(len(phases) - 1):
        if it: it()
    stamp_end()
    rt_end(a, 98, 0, SRD_O, S_WAVE)
    a.e("s_endpgm")
    a.label(f"K1e_{typ}")

def gen_k1():
    a = Asm()
    a.e("s_cmp_ge_u32 s2, 256")
    a.e("s_cbranch_scc1 K1_exit")
    a.e("s_load_dwordx16 s[16:31], s[0:1], 0")
    a.e("s_load_dwordx16 s[32:47], s[0:1], 64")
    a.e("s_load_dwordx4 s[48:51], s[0:1], 128")
    a.e(f"v_lshrrev_b32 v1, 6, v0")
    a.e("s_nop 0")
    a.e(f"v_readfirstlane_b32 s{S_WAVE}, v1")
    a.e(f"s_lshr_b32 s{S_MB}, s2, 5")
    a.e(f"s_and_b32 s{S_U}, s2, 31")
    a.e(f"s_add_u32 s{S_ROT}, s2, s{S_MB}")
    a.e(f"s_and_b32 s{S_ROT}, s{S_ROT}, 7")
    a.e("s_waitcnt lgkmcnt(0)")
    rt_start(a, 98)
    a.e(f"s_cmp_lt_u32 s{S_U}, 13")
    a.e("s_cbranch_scc1 K1_K10")
    a.e(f"s_cmp_lt_u32 s{S_U}, 26")
    a.e("s_cbranch_scc1 K1_V10")
    a.e("s_branch K1_S6")
    a.label("K1_exit")
    a.e("s_endpgm")
    for typ in ["K10", "V10", "S6"]:
        a.label(f"K1_{typ}")
        a.vmq = []; a.lgq = []
        gen_type(a, typ)
    return kernel_wrap("k1_kernel", a.text(), 512, 256)
```

```python
from common import *
import struct, math
def f2u(x):
    return "0x%08x" % struct.unpack("<I", struct.pack("<f", x))[0]

P = dict(A_x=16, ckv=18, wq=20, wuk=22, wuv=24, wo=26, Bx=28, Lre=30, Lim=32, Bre=34, Bim=36, Cre=38, Cim=40,
         logdt=42, Dskip=44, out=46, dbg=48, ws=50)
S_WAVE, S_H, S_I = 3, 4, 5
S_T0, S_T1, S_T2, S_T3 = 6, 7, 8, 9
S_GRP, S_WQ, S_J, S_SW, S_ROW0, S_FIRST = 10, 11, 12, 13, 14, 15
SRD_X, SRD_WQ, SRD_KV, SRD_O, SRD_E = 52, 56, 60, 64, 68
S_FIN, S_TJ, S_TJ1, S_TJ2, S_LD, S_KVH, S_NOCHK, S_SKIP = 72, 73, 74, 75, 76, 77, 78, 79
S_M = 80
S_XL, S_XG, S_WB, S_ROWA, S_PAR, S_ROWB = 88, 89, 90, 91, 92, 93
S_THR, S_NEG = 94, 95
S_POST = 99

O0, S0, P0, Q0, NM0, FR0 = 0, 64, 96, 112, 144, 160
NF = 8
V_RD, V_CO, V_PS0, V_PS1, V_D, V_LANE16, V_COL = 224, 225, 228, 229, 230, 231, 232
V_M, V_L = 152, 154
TT = 234
V_TRW, V_XQ0, V_XQ1, V_XR = 251, 247, 248, 249
V_WQD = 253
XF0 = 64
WF0 = 192

LDS_QST = 131072
LDS_WR = 98304
CSCALE = (128 ** -0.5) * 1.4426950408889634
THR = 2.0 ** 60
NEGBIG = -1.0e30
DIAG = False
import os
STF = os.environ.get('STF2', 'sc1')
BM_POS = 0
PRIO = False
SPLIT = False
CPF = False
DMAM = int(os.environ.get('DMAM', '0'))

class Proxy:
    def __init__(self, t): self.__dict__['t'] = t
    def __getattr__(self, k): return getattr(self.__dict__['t'], k)
    def __setattr__(self, k, v):
        if k == 't': self.__dict__['t'] = v
        else: setattr(self.__dict__['t'], k, v)

def m16(d, a_, b_, c):
    return f"v_mfma_f32_16x16x32_bf16 {d}, {a_}, {b_}, {c}"

def gen_k2():
    A_ = Asm()
    a = Proxy(A_)
    def st_now(idx):
        if not DIAG: return
        a.e("s_memtime s[100:101]")
        a.e("s_waitcnt lgkmcnt(0)")
        a.e(f"v_writelane_b32 v255, s100, {idx}")
    a.e("s_cmp_ge_u32 s2, 256")
    a.e("s_cbranch_scc1 K2_exit")
    a.e("s_load_dwordx16 s[16:31], s[0:1], 0")
    a.e("s_load_dwordx16 s[32:47], s[0:1], 64")
    a.e("s_load_dwordx4 s[48:51], s[0:1], 128")
    a.e("v_lshrrev_b32 v1, 6, v0")
    a.e("v_and_b32 v233, 63, v0")
    a.e(f"v_readfirstlane_b32 s{S_WAVE}, v1")
    a.e(f"s_and_b32 s{S_H}, s2, 31")
    a.e(f"s_lshr_b32 s{S_I}, s2, 5")
    a.e(f"s_lshr_b32 s{S_GRP}, s{S_WAVE}, 2")
    a.e(f"s_and_b32 s{S_WQ}, s{S_WAVE}, 3")
    a.e(f"v_lshlrev_b32 v{V_LANE16}, 4, v233")
    a.e("s_waitcnt lgkmcnt(0)")
    rt_start(a, 100)
    st_now(0)
    if DIAG:
        a.e("s_memrealtime s[100:101]")
        a.e("s_waitcnt lgkmcnt(0)")
        a.e("v_writelane_b32 v255, s100, 60")
    srd(a, SRD_O, P['ws'], P['ws'] + 1, 64 << 20)
    srd_off(a, SRD_E, P['ws'], P['ws'] + 1, E32_OFF, 64 * 4096)

    srd(a, SRD_X, P['A_x'], P['A_x'] + 1, 2048 * 512 * 2)
    srd(a, SRD_WQ, P['wq'], P['wq'] + 1, 512 * 4096 * 2)
    srd(a, SRD_KV, P['ws'], P['ws'] + 1, 32 << 20)
    a.e(f"s_sub_u32 s{S_T0}, 15, s{S_I}")
    a.e(f"s_lshl_b32 s{S_T0}, s{S_T0}, 7")
    a.e(f"s_lshl_b32 s{S_T1}, s{S_WQ}, 5")
    a.e(f"s_add_u32 s{S_ROWA}, s{S_T0}, s{S_T1}")
    a.e(f"s_lshl_b32 s{S_T0}, s{S_I}, 7")
    a.e(f"s_add_u32 s{S_ROWB}, s{S_T0}, s{S_T1}")
    a.e(f"s_lshl_b32 s{S_T0}, s{S_I}, 1")
    a.e(f"s_add_u32 s{S_T1}, s{S_T0}, 1")
    a.e(f"s_cmp_eq_u32 s{S_GRP}, 0")
    a.e(f"s_cselect_b32 s{S_ROW0}, s{S_ROWA}, s{S_ROWB}")
    a.e(f"s_cselect_b32 s{S_SW}, 99, s{S_T1}")
    a.e(f"s_sub_u32 s{S_SKIP}, 15, s{S_T0}")
    a.e(f"s_lshl_b32 s{S_XL}, s{S_WAVE}, 13")
    a.e(f"s_cmp_lt_u32 s{S_WAVE}, 6")
    a.e(f"s_mov_b32 s{S_T1}, 32768")
    a.e(f"s_cselect_b32 s{S_T0}, 16384, s{S_T1}")
    a.e(f"s_add_u32 s{S_XL}, s{S_XL}, s{S_T0}")
    a.e(f"s_lshl_b32 s{S_XG}, s{S_ROW0}, 10")
    X = TT; Y = TT + 1; Z = TT + 2
    a.e(f"v_lshrrev_b32 v{X}, 3, v233")
    a.e(f"v_and_b32 v{Y}, 7, v233")
    for q, dst in enumerate([V_XQ0, V_XQ1]):
        a.e(f"v_add_u32 v{Z}, {8*q}, v{X}")
        a.e(f"v_bfe_u32 v{Z+1}, v{Z}, 1, 3")
        a.e(f"v_xor_b32 v{Z+1}, v{Z+1}, v{Y}")
        a.e(f"v_lshlrev_b32 v{Z+1}, 4, v{Z+1}")
        a.e(f"v_lshl_add_u32 v{Z+1}, v{Z}, 10, v{Z+1}")
        a.e(f"v_subrev_u32 v{dst}, {1024*q}, v{Z+1}")
    a.e(f"v_and_b32 v{X}, 15, v233")
    a.e(f"v_lshlrev_b32 v{Y}, 7, v{X}")
    a.e(f"v_add_u32 v{Y}, s{S_XL}, v{Y}")
    a.e(f"v_bfe_u32 v{Z}, v233, 1, 3")
    a.e(f"v_lshrrev_b32 v{Z+1}, 4, v233")
    a.e(f"v_xor_b32 v{Z}, v{Z}, v{Z+1}")
    a.e(f"v_lshl_add_u32 v{V_XR}, v{Z}, 4, v{Y}")
    a.e(f"v_xor_b32 v{V_XR+1}, 64, v{V_XR}")
    a.e(f"v_lshlrev_b32 v{Z+1}, 2, v{Z+1}")
    a.e(f"v_sub_u32 v{V_COL}, v{X}, v{Z+1}")
    a.e(f"v_lshlrev_b32 v{V_CO}, 4, v{X}")
    a.e(f"v_bfe_u32 v{Y}, v233, 4, 1")
    a.e(f"v_lshl_add_u32 v{V_CO}, v{Y}, 9, v{V_CO}")
    a.e(f"v_lshrrev_b32 v{Y}, 5, v233")
    a.e(f"v_lshl_add_u32 v{V_CO}, v{Y}, 10, v{V_CO}")
    WQD = [V_WQD, V_WQD + 1]
    a.e(f"v_lshlrev_b32 v{Y}, 1, v{Y}")
    a.e(f"v_and_b32 v{X}, 3, v233")
    a.e(f"v_xor_b32 v{Y}, v{X}, v{Y}")
    a.e(f"v_lshlrev_b32 v{WQD[0]}, 4, v{Y}")
    a.e(f"v_lshrrev_b32 v{X}, 2, v233")
    a.e(f"v_lshl_add_u32 v{WQD[0]}, v{X}, 13, v{WQD[0]}")
    a.e(f"v_add_u32 v{WQD[1]}, {16*8192 - 1024}, v{WQD[0]}")
    a.e(f"s_lshl_b32 s{S_WB}, s{S_H}, 8")
    a.e(f"s_lshr_b32 s{S_T0}, s{S_WAVE}, 1")
    a.e(f"s_lshl_b32 s{S_T0}, s{S_T0}, 6")
    a.e(f"s_add_u32 s{S_WB}, s{S_WB}, s{S_T0}")
    a.e(f"s_and_b32 s{S_T0}, s{S_WAVE}, 1")
    a.e(f"s_lshl_b32 s{S_T0}, s{S_T0}, 18")
    a.e(f"s_add_u32 s{S_WB}, s{S_WB}, s{S_T0}")
    a.e(f"v_lshrrev_b32 v{X}, 4, v233")
    a.e(f"v_lshlrev_b32 v{V_TRW}, 9, v{X}")
    a.e(f"v_bfe_u32 v{Y}, v233, 2, 2")
    a.e(f"v_lshl_add_u32 v{V_TRW}, v{Y}, 6, v{V_TRW}")
    a.e(f"v_and_b32 v{Y}, 3, v233")
    a.e(f"v_lshl_add_u32 v{V_TRW}, v{Y}, 3, v{V_TRW}")
    a.e(f"v_and_b32 v{X}, 1, v{X}")
    a.e(f"v_lshl_add_u32 v{V_TRW}, v{X}, 5, v{V_TRW}")
    a.e(f"v_add_u32 v{V_TRW}, {LDS_WR}, v{V_TRW}")
    a.e(f"v_xor_b32 v{V_TRW+1}, 32, v{V_TRW}")
    a.e(f"s_lshl_b32 s{S_T0}, s{S_GRP}, 16")
    a.e(f"s_lshl_b32 s{S_T1}, s{S_WQ}, 12")
    a.e(f"s_add_u32 s{S_LD}, s{S_T0}, s{S_T1}")
    a.e(f"s_lshl_b32 s{S_KVH}, s{S_H}, 19")
    a.e(f"s_add_u32 s{S_KVH}, s{S_KVH}, s{S_T1}")
    a.e(f"v_add_u32 v{V_RD}, s{S_T0}, v{V_LANE16}")
    a.e(f"s_mov_b32 s{S_THR}, {f2u(THR)}")
    a.e(f"s_mov_b32 s{S_NEG}, {f2u(NEGBIG)}")

    def w_dma(n):
        a.e(f"s_lshl_b32 s{S_T0}, s{S_WAVE}, 11")
        a.e(f"s_add_u32 m0, s{S_T0}, {LDS_WR + (n % 3) * 16384}")
        a.e(f"s_add_u32 s{S_T0}, s{S_WB}, {n * 524288}")
        for q in range(2):
            a.vm(f"buffer_load_dwordx4 v{WQD[q]}, s[{SRD_WQ}:{SRD_WQ+3}], s{S_T0} offen offset:{1024*q} lds", ('w', n))
    def x_dma(c):
        for qq in range(2):
            a.e(f"s_add_u32 m0, s{S_XL}, {(c & 1) * 4096 + qq * 2048}")
            a.e(f"s_add_u32 s{S_T0}, s{S_XG}, {c * 128 + qq * 16384}")
            a.vm(f"buffer_load_dwordx4 v{V_XQ0}, s[{SRD_X}:{SRD_X+3}], s{S_T0} offen lds", ('x', c))
            a.vm(f"buffer_load_dwordx4 v{V_XQ1}, s[{SRD_X}:{SRD_X+3}], s{S_T0} offen offset:1024 lds", ('x', c))
    def x_read(c):
        a.wait(vm=('x', c))
        for up in range(2):
            for qt in range(2):
                r = XF0 + ((c & 3) * 4 + up * 2 + qt) * 4
                a.ds(f"ds_read_b128 v[{r}:{r+3}], v{V_XR+up} offset:{(c & 1) * 4096 + qt * 2048}", ('xr', c))
    def kv_dma(which, s_tile, buf_expr_off, tag):
        a.e(f"s_lshl_b32 s{S_T0}, s{s_tile}, 14")
        a.e(f"s_add_u32 s{S_T0}, s{S_T0}, s{S_KVH}")
        if which == 'V': a.e(f"s_add_u32 s{S_T0}, s{S_T0}, {VF_OFF}")
        for q in range(4):
            a.vm(f"buffer_load_dwordx4 v{V_LANE16}, s[{SRD_KV}:{SRD_KV+3}], s{S_T0} offen offset:{1024*q} lds", tag)

    SC, SG = 96, 97
    E0 = 128
    B0 = 160
    CL, CL8, CL32, CLS, CCO = 176, 178, 180, 182, 184
    VA, VB_, VSUB, VCH = 186, 187, 188, 189
    S_HS = 98
    def scan_loads():
        a.e(f"s_lshl_b32 s{S_T2}, s2, 3")
        a.e(f"s_add_u32 s{S_T2}, s{S_T2}, s{S_WAVE}")
        a.e(f"s_lshr_b32 s{SC}, s{S_T2}, 5")
        a.e(f"s_and_b32 s{SG}, s{S_T2}, 31")
        a.e(f"v_and_b32 v{VCH}, 15, v233")
        a.e(f"v_lshrrev_b32 v{VSUB}, 4, v233")
        a.e(f"s_lshl_b32 s{S_T2}, s{SG}, 7")
        a.e(f"v_lshlrev_b32 v{VA}, 3, v{VCH}")
        a.e(f"v_add_u32 v{VA}, s{S_T2}, v{VA}")
        a.e(f"s_mov_b32 s{S_T3}, {TAB_OFF}")
        a.e(f"s_add_u32 s{S_T2}, s{S_T3}, {2*4096}")
        a.vm(f"buffer_load_dwordx2 v[{CL32}:{CL32+1}], v{VA}, s[{SRD_O}:{SRD_O+3}], s{S_T2} offen", 'sc')
        a.e(f"v_lshlrev_b32 v{VB_}, 16, v{VSUB}")
        a.e(f"v_sub_u32 v{VB_}, v{VA}, v{VB_}")
        a.e(f"s_lshl_b32 s{S_T2}, s{SC}, 12")
        a.e(f"s_sub_u32 s{S_T2}, s{S_T2}, {16*4096}")
        a.e(f"v_add_u32 v{VB_}, s{S_T2}, v{VB_}")
        for i in range(16):
            a.vm(f"buffer_load_dwordx2 v[{E0+2*i}:{E0+2*i+1}], v{VB_}, s[{SRD_E}:{SRD_E+3}], 0 offen", ('e', i))
            if i < 15: a.e(f"v_add_u32 v{VB_}, 0x1000, v{VB_}")
        a.vm(f"buffer_load_dwordx2 v[{CL}:{CL+1}], v{VA}, s[{SRD_O}:{SRD_O+3}], s{S_T3} offen", 'sc2')
        a.e(f"s_add_u32 s{S_T2}, s{S_T3}, 4096")
        a.vm(f"buffer_load_dwordx2 v[{CL8}:{CL8+1}], v{VA}, s[{SRD_O}:{SRD_O+3}], s{S_T2} offen", 'sc2')
        a.e(f"s_add_u32 s{S_T2}, s{S_T3}, {6*4096}")
        a.vm(f"buffer_load_dwordx2 v[{CCO}:{CCO+1}], v{VA}, s[{SRD_O}:{SRD_O+3}], s{S_T2} offen", 'sc2')
        a.e(f"v_lshl_add_u32 v{VB_}, v{VSUB}, 12, v{VA}")
        a.e(f"s_add_u32 s{S_T2}, s{S_T3}, {2*4096}")
        a.vm(f"buffer_load_dwordx2 v[{CLS}:{CLS+1}], v{VB_}, s[{SRD_O}:{SRD_O+3}], s{S_T2} offen", 'sc2')
        a.e(f"s_lshl_b32 s{S_T2}, s{SC}, 17")
        a.e(f"s_lshr_b32 s{S_T3}, s{SG}, 1")
        a.e(f"s_lshl_b32 s{S_T3}, s{S_T3}, 13")
        a.e(f"s_add_u32 s{S_T2}, s{S_T2}, s{S_T3}")
        a.e(f"s_and_b32 s{S_T3}, s{SG}, 1")
        a.e(f"s_lshl_b32 s{S_T3}, s{S_T3}, 8")
        a.e(f"s_add_u32 s{S_T2}, s{S_T2}, s{S_T3}")
        a.e(f"s_add_u32 s{S_T2}, s{S_T2}, {BU_OFF}")
        a.e(f"s_add_u32 s{S_T3}, s{S_T2}, 4096")
        a.e(f"v_lshlrev_b32 v{VB_}, 4, v{VCH}")
        a.e(f"v_lshl_add_u32 v{VB_}, v{VSUB}, 10, v{VB_}")
        for part in range(2):
            for hf in range(2):
                r = B0 + part * 8 + hf * 4
                a.vm(f"buffer_load_dwordx4 v[{r}:{r+3}], v{VB_}, s[{SRD_O}:{SRD_O+3}], s{S_T2 if part == 0 else S_T3} offen offset:{512*hf}", 'bu')
        a.e(f"s_lshl_b32 s{S_HS}, s{SC}, 6")
        a.e(f"s_lshl_b32 s{S_T2}, s{SG}, 1")
        a.e(f"s_add_u32 s{S_HS}, s{S_HS}, s{S_T2}")
        a.e(f"s_lshl_b32 s{S_HS}, s{S_HS}, 10")
        a.e(f"s_add_u32 s{S_HS}, s{S_HS}, {HF_OFF}")


    w_dma(0); x_dma(0)
    a.e("s_barrier")
    x_dma(1); w_dma(1); w_dma(2)
    if CPF:
        code_prefetch(a, "K2c", "K2e", 49152, 8, S_WAVE, V_LANE16, 216, 220, 84)
    a.e(f"s_mov_b32 s{S_TJ}, 0")

    AC, T0_, T1_ = 190, TT + 4, TT + 6
    scan = []
    def S(f): scan.append(f)
    def cfma(d, x, l, b_re, b_im, t):
        a.e(f"v_fma_f32 v{t}, v{x}, v{l}, v{b_re}")
        a.e(f"v_fma_f32 v{t+1}, v{x}, v{l+1}, v{b_im}")
        a.e(f"v_fma_f32 v{d}, -v{x+1}, v{l+1}, v{t}")
        a.e(f"v_fma_f32 v{d+1}, v{x+1}, v{l}, v{t+1}")
    def cmul(d, x, l, t):
        a.e(f"v_mul_f32 v{t}, v{x}, v{l}")
        a.e(f"v_mul_f32 v{t+1}, v{x}, v{l+1}")
        a.e(f"v_fma_f32 v{d}, -v{x+1}, v{l+1}, v{t}")
        a.e(f"v_fma_f32 v{d+1}, v{x+1}, v{l}, v{t+1}")
    def f():
        a.e(f"v_cmp_lt_u32 s[{S_M}:{S_M+1}], 0, v{VSUB}")
        a.e(f"v_cmp_lt_u32 s[{S_M+2}:{S_M+3}], 1, v{VSUB}")
        a.e(f"v_cmp_lt_u32 s[{S_M+4}:{S_M+5}], 2, v{VSUB}")
        a.wait(vm='bu')
    S(f)
    S(lambda: cfma(AC, E0, CL32, E0 + 2, E0 + 3, T0_))
    for i in range(2, 16):
        S(lambda i=i: cfma(AC, AC, CL32, E0 + 2 * i, E0 + 2 * i + 1, T0_))
    def f():
        a.e(f"v_cndmask_b32 v{CLS}, 1.0, v{CLS}, s[{S_M}:{S_M+1}]")
        a.e(f"v_cndmask_b32 v{CLS+1}, 0, v{CLS+1}, s[{S_M}:{S_M+1}]")
    S(f)
    S(lambda: cmul(AC, AC, CLS, T0_))
    for sw in ("v_permlane32_swap_b32", "v_permlane16_swap_b32"):
        def f(sw=sw):
            a.e(f"v_mov_b32 v{T0_}, v{AC}")
            a.e(f"v_mov_b32 v{T0_+1}, v{AC+1}")
            a.e("s_nop 1")
            a.e(f"{sw} v{AC}, v{T0_}")
            a.e(f"{sw} v{AC+1}, v{T0_+1}")
        S(f)
        def f():
            a.e(f"v_add_f32 v{AC}, v{AC}, v{T0_}")
            a.e(f"v_add_f32 v{AC+1}, v{AC+1}, v{T0_+1}")
        S(f)
    def bu(k, part): return B0 + part * 8 + k
    EN = E0
    def f():
        a.e(f"v_fma_f32 v{T0_}, v{bu(0,0)}, v{CL}, v{bu(1,0)}")
        a.e(f"v_fma_f32 v{T0_+1}, v{bu(0,0)}, v{CL+1}, v{bu(1,1)}")
        a.e(f"v_fma_f32 v{EN}, -v{bu(0,1)}, v{CL+1}, v{T0_}")
        a.e(f"v_fma_f32 v{EN+1}, v{bu(0,1)}, v{CL}, v{T0_+1}")
    S(f)
    for k in range(2, 8):
        S(lambda k=k: cfma(EN, EN, CL, bu(k, 0), bu(k, 1), T0_))
    def f():
        a.e(f"v_lshlrev_b32 v{VA}, 2, v{VCH}")
        for jp in range(3):
            if jp: a.e(f"v_add_u32 v{VA}, 64, v{VA}")
            a.ds(f"ds_bpermute_b32 v{EN+2+2*jp}, v{VA}, v{EN}", 'bp')
            a.ds(f"ds_bpermute_b32 v{EN+3+2*jp}, v{VA}, v{EN+1}", 'bp')
    S(f)
    def f():
        a.e(f"v_bfe_u32 v{VB_}, v{VCH}, 2, 1")
        a.e(f"v_lshlrev_b32 v{VB_}, 10, v{VB_}")
        a.e(f"v_bfe_u32 v{T1_}, v{VCH}, 3, 1")
        a.e(f"v_lshl_add_u32 v{VB_}, v{T1_}, 9, v{VB_}")
    S(f)
    def f():
        a.e(f"v_and_b32 v{T1_}, 3, v{VCH}")
        a.e(f"v_lshl_add_u32 v{VB_}, v{T1_}, 2, v{VB_}")
        a.e(f"v_lshl_add_u32 v{VB_}, v{VSUB}, 7, v{VB_}")
    S(f)
    for jp in range(3):
        def f(jp=jp):
            a.wait(lg='bp')
            cfma(T1_, AC, CL8, EN + 2 + 2 * jp, EN + 3 + 2 * jp, T0_)
        S(f)
        def f(jp=jp):
            a.e(f"v_cndmask_b32 v{AC}, v{AC}, v{T1_}, s[{S_M+2*jp}:{S_M+2*jp+1}]")
            a.e(f"v_cndmask_b32 v{AC+1}, v{AC+1}, v{T1_+1}, s[{S_M+2*jp}:{S_M+2*jp+1}]")
        S(f)
    for k in range(8):
        S(lambda k=k: cfma(AC, AC, CL, bu(k, 0), bu(k, 1), T0_))
        S(lambda k=k: cmul(EN + 8 + 2 * (k & 3), AC, CCO, T0_))
        def f(k=k):
            h = EN + 8 + 2 * (k & 3)
            a.e(f"v_cvt_pk_bf16_f32 v{EN+16+k}, v{h}, -v{h+1}")
            a.vm(f"buffer_store_dword v{EN+16+k}, v{VB_}, s[{SRD_O}:{SRD_O+3}], s{S_HS} offen offset:{16*k}", 'hs')
        S(f)

    st_now(1)
    x_read(0)
    a.wait(lg=('xr', 0)); x_dma(2)
    x_read(1)
    a.wait(lg=('xr', 1)); x_dma(3)
    wfr = [(n, up, un, t) for n in range(8) for up in range(2) for un in range(4) for t in range(2)]
    def w_issue(f):
        n, up, un, t = wfr[f]
        r = WF0 + (f % NF) * 4
        off = (n % 3) * 16384 + un * 4096 + up * 2048
        a.ds(f"ds_read_b64_tr_b16 v[{r}:{r+1}], v{V_TRW+t} offset:{off}", ('wf', f))
        a.ds(f"ds_read_b64_tr_b16 v[{r+2}:{r+3}], v{V_TRW+t} offset:{off+256}", ('wf', f))
    sl = Rec(); a.t = sl; scan_loads(); a.t = A_
    sc = Rec(); a.t = sc
    for it in scan: it()
    a.t = A_
    scan[:] = []
    a.wait(vm=('w', 0))
    a.e("s_barrier")
    fn = 0; landed = 0
    for f, (n, up, un, t) in enumerate(wfr):
        fi = f & 15
        if fi == 0:
            if DIAG: st_now(48 + n); a.lgq = []
            if n + 1 < 8: a.wait(vm=('w', n + 1))
            a.e("s_barrier")
            landed = n + 1
            if n >= 1 and n + 2 < 8: w_dma(n + 2)
            if f == 0:
                while fn < NF: w_issue(fn); fn += 1
        a.wait(lg=('wf', f))
        if fi == 0: a.wait(lg=('xr', n))
        for qt in range(2):
            D = vr(O0 + (qt * 8 + 2 * un + t) * 4, 4)
            a.e(m16(D, vr(WF0 + (f % NF) * 4, 4), vr(XF0 + ((n & 3) * 4 + up * 2 + qt) * 4, 4), "0" if (n == 0 and up == 0) else D))
        if fn < len(wfr) and fn - NF <= f and wfr[fn][0] <= landed:
            w_issue(fn); fn += 1
        if fi == 5 and n + 2 < 8: x_read(n + 2)
        if fi == 10 and n + 4 < 8:
            a.wait(lg=('xr', n + 2)); x_dma(n + 4)
        if f == 52:
            a.e(f"s_mov_b32 m0, s{S_LD}")
            kv_dma('K', S_TJ, 0, 'k0')
        if len(sl):
            for _ in range(2):
                if len(sl): sl.pop(A_)
        elif f >= 56:
            for _ in range(5):
                if len(sc): sc.pop(A_)
    assert not len(sc), len(sc)
    a.wait(vm='k0')
    a.e("s_barrier")
    st_now(2)
    if DIAG:
        a.e("s_memrealtime s[100:101]")
        a.e("s_waitcnt lgkmcnt(0)")
        a.e("v_writelane_b32 v255, s100, 61")
    if DIAG: a.e("s_mov_b32 s100, 4"); a.e("s_mov_b32 s0, 0")
    a.e(f"s_mov_b32 s{S_TJ1}, 1")
    a.e(f"s_add_u32 m0, s{S_LD}, 32768")
    kv_dma('K', S_TJ1, 0, 'st')
    a.e(f"s_add_u32 m0, s{S_LD}, {32768 + 16384}")
    kv_dma('V', S_TJ, 0, 'st')
    a.e(f"s_mov_b32 s{S_T1}, {f2u(CSCALE)}")
    for r in range(64):
        a.e(f"v_mul_f32 v{O0+r}, s{S_T1}, v{O0+r}")
    for k in range(32):
        a.e(f"v_cvt_pk_bf16_f32 v{Q0+k}, v{O0+2*k}, v{O0+2*k+1}")
    for r in range(64): a.e(f"v_mov_b32 v{O0+r}, 0")
    for r in range(12): a.e(f"v_mov_b32 v{NM0+r}, 0")
    a.e(f"s_mov_b32 s{S_J}, 0")
    a.e(f"s_mov_b32 s{S_FIRST}, 1")
    a.e(f"s_mov_b32 s{S_FIN}, 0")
    a.e(f"s_mov_b32 s{S_PAR}, 0")
    a.e(f"s_mov_b32 s{S_NOCHK}, 0")
    a.e(f"s_add_u32 s{S_T0}, s{S_SKIP}, 2")
    a.e(f"s_cmp_lt_u32 s{S_SW}, 2")
    a.e(f"s_cselect_b32 s{S_TJ2}, s{S_T0}, 2")
    a.e(f"s_lshl_b32 s{S_T0}, s{S_WQ}, 13")
    a.e(f"s_add_u32 s{S_T0}, s{S_T0}, {LDS_QST}")
    a.e(f"v_add_u32 v{V_XR}, s{S_T0}, v{V_LANE16}")
    a.e(f"s_cmp_eq_u32 s{S_GRP}, 0")
    a.e("s_cbranch_scc0 K2_qk0")
    for k in range(8):
        a.e(f"ds_write_b128 v{V_XR}, v[{Q0+4*k}:{Q0+4*k+3}] offset:{1024*k}")
    a.e("s_waitcnt lgkmcnt(0)")
    a.e("s_barrier")
    a.label("K2_qk0")
    a.lgq = []

    def frag_list(qk, pv):
        fl = []
        if qk: fl += [('K', kt, ds) for kt in range(4) for ds in range(4)]
        if pv: fl += [('V', T, dt) for T in range(2) for dt in range(8)]
        return fl
    def f_issue(fl, i):
        kind, x, y = fl[i]
        r = FR0 + (i % NF) * 4
        off = (x * 4 + y) * 1024 if kind == 'K' else 16384 + (x * 8 + y) * 1024
        a.ds(f"ds_read_b128 v[{r}:{r+3}], v{V_RD} offset:{off}", ('f', i))
    S1 = [S0 + 16, 192]
    def m_phase(fl, bar_after, pdst, side=None, after_qk=None):
        nk = sum(1 for f in fl if f[0] == 'K')
        for i, (kind, x, y) in enumerate(fl):
            if i == bar_after:
                a.e("s_barrier")
                if DIAG: a.e("s_memtime s[0:1]")
            if i == nk and after_qk:
                while side is not None and len(side): side.pop(A_)
                after_qk()
            a.wait(lg=('f', i))
            fr = vr(FR0 + (i % NF) * 4, 4)
            for qt in range(2):
                if kind == 'K':
                    D = vr((S0 if qt == 0 else S1[pdst]) + x * 4, 4)
                    a.e(m16(D, fr, vr(Q0 + (qt * 4 + y) * 4, 4), vr(NM0 + qt * 4, 4) if y == 0 else D))
                else:
                    D = vr(O0 + (qt * 8 + y) * 4, 4)
                    a.e(m16(D, fr, vr(P0 + (qt * 2 + x) * 4, 4), D))
                if side is not None and len(side) and (qt == 0 or (i & 1)):
                    side.pop(A_)
            if i + NF < len(fl): f_issue(fl, i + NF)

    fl = frag_list(True, False)
    for i in range(NF): f_issue(fl, i)
    m_phase(fl, -1, 0)

    def store_ctx(srow, tag):
        a.e(f"s_lshl_b32 s{S_T0}, s{srow}, 13")
        a.e(f"s_lshl_b32 s{S_T1}, s{S_H}, 13")
        a.e(f"s_add_u32 s{S_T0}, s{S_T0}, s{S_T1}")
        a.e(f"s_add_u32 s{S_T0}, s{S_T0}, {CTX_OFF}")
        a.e(f"s_add_u32 s{S_T1}, s{S_T0}, 4096")
        for f in range(8):
            qt, Pp = f >> 2, f & 3
            t = P0 + (f % 4) * 4
            for k in range(4):
                a.e(f"v_cvt_pk_bf16_f32 v{t+k}, v{O0+f*8+2*k}, v{O0+f*8+2*k+1}")
            a.e(f"buffer_store_dwordx4 v[{t}:{t+3}], v{V_CO}, s[{SRD_O}:{SRD_O+3}], s{S_T0 if Pp < 2 else S_T1} offen offset:{2048*(Pp&1) + 256*qt} {STF}")

    def exp_block(q, qt, sb, dma):
        tb = TT if qt == 0 else TT + 8 - 8 + 0
        tmp = [TT, TT + 2, TT + 4, TT + 6] if qt == 0 else [208, 210, 212, 214]
        ps = V_PS0 if qt == 0 else V_PS1
        prs = [(sb + kt * 4 + 2 * hh, P0 + (qt * 2 + (kt >> 1)) * 4 + (kt & 1) * 2 + hh) for kt in range(4) for hh in range(2)]
        def consume(n):
            t = tmp[n % 4]
            if n == 0:
                q.e(f"v_add_f32 v{ps}, v{t}, v{t+1}")
            else:
                q.e(f"v_add_f32 v{ps}, v{ps}, v{t}")
                q.e(f"v_add_f32 v{ps}, v{ps}, v{t+1}")
            q.e(f"v_cvt_pk_bf16_f32 v{prs[n][1]}, v{t}, v{t+1}")
        for n, (sa, pd) in enumerate(prs):
            t = tmp[n % 4]
            if dma is True:
                if n in (0, 4): q.e(f"s_add_u32 m0, s{S_XG}, {0 if n == 0 else 16384}")
            elif dma and n == 0: q.e(f"s_add_u32 m0, s{S_XG}, {0 if dma == 1 else 16384}")
            q.e(f"v_exp_f32 v{t}, v{sa}")
            if dma is True: q.e(f"buffer_load_dwordx4 v{V_LANE16}, s[{SRD_KV}:{SRD_KV+3}], s{S_T2 if n < 4 else S_T3} offen offset:{1024*(n & 3)} lds")
            elif dma and not (n & 1): q.e(f"buffer_load_dwordx4 v{V_LANE16}, s[{SRD_KV}:{SRD_KV+3}], s{S_T2 if dma == 1 else S_T3} offen offset:{1024*(n >> 1)} lds")
            q.e(f"v_exp_f32 v{t+1}, v{sa+1}")
            if n >= 2: consume(n - 2)
        consume(6); consume(7)

    def scal_next():
        a.e(f"s_mov_b32 s{S_TJ}, s{S_TJ1}")
        a.e(f"s_mov_b32 s{S_TJ1}, s{S_TJ2}")
        a.e(f"s_add_u32 s{S_T0}, s{S_J}, 3")
        a.e(f"s_add_u32 s{S_T1}, s{S_T0}, s{S_SKIP}")
        a.e(f"s_cmp_gt_u32 s{S_T0}, s{S_SW}")
        a.e(f"s_cselect_b32 s{S_TJ2}, s{S_T1}, s{S_T0}")
        a.e(f"s_min_u32 s{S_TJ2}, s{S_TJ2}, 31")
        a.e(f"s_xor_b32 s{S_PAR}, s{S_PAR}, 0x8000")
        a.e(f"s_add_u32 s{S_J}, s{S_J}, 1")
        scal_dma()
    def scal_dma():
        a.e(f"s_lshl_b32 s{S_T2}, s{S_TJ2}, 14")
        a.e(f"s_add_u32 s{S_T2}, s{S_T2}, s{S_KVH}")
        a.e(f"s_lshl_b32 s{S_T3}, s{S_TJ1}, 14")
        a.e(f"s_add_u32 s{S_T3}, s{S_T3}, s{S_KVH}")
        a.e(f"s_add_u32 s{S_T3}, s{S_T3}, {VF_OFF}")
        a.e(f"s_add_u32 s{S_XG}, s{S_LD}, s{S_PAR}")
        a.e(f"s_lshl_b32 s{S_XL}, s{S_TJ}, 6")
        a.e(f"s_add_u32 s{S_WB}, s{S_XL}, 63")
        a.e(f"s_cmp_gt_u32 s{S_WB}, s{S_ROW0}")
        a.e(f"s_cselect_b32 s{S_WB}, 1, s{S_FIRST}")
        a.e(f"s_cmp_eq_u32 s{S_J}, s{S_SW}")
        a.e(f"s_cselect_b32 s{S_POST}, 1, 0")
        a.e(f"s_cmp_eq_u32 s{S_J}, 15")
        a.e(f"s_cselect_b32 s{S_POST}, 1, s{S_POST}")

    def body(sfx, p, last):
        a.e("s_waitcnt vmcnt(0)" if not last else "s_waitcnt vmcnt(3)")
        a.e("s_barrier")
        if DIAG:
            a.e("s_memtime s[96:97]")
            a.e("s_waitcnt lgkmcnt(0)")
            a.e("s_sub_u32 m0, s100, 1")
            a.e("v_writelane_b32 v255, s0, m0")
            a.e("s_mov_b32 m0, s100")
            a.e("v_writelane_b32 v255, s96, m0")
            a.e("s_add_u32 s100, s100, 2")
            a.e(f"s_add_u32 m0, s{S_J}, 39")
            a.e("s_min_u32 m0, m0, 47")
            a.e("v_writelane_b32 v255, s86, m0")
        fl = frag_list(not last, True)
        a.lgq = []
        for i in range(NF): f_issue(fl, i)
        a.e(f"s_cmp_lg_u32 s{S_WB}, 0")
        a.e(f"s_cbranch_scc1 K2_spec{sfx}")
        a.label(f"K2_exp{sfx}")
        exp_block(a, 0, S0, (not last) and DMAM < 2 and (True if SPLIT else 1))
        a.e(f"v_cmp_ngt_f32 vcc, s{S_THR}, v{V_PS0}")
        a.e(f"s_cbranch_vccnz K2_chk{sfx}")
        a.label(f"K2_ok{sfx}")
        a.e(f"v_add_f32 v{V_L}, v{V_L}, v{V_PS0}")
        if not SPLIT:
            exp_block(a, 1, S1[p], (not last) and DMAM < 1 and 2)
            a.e(f"v_cmp_ngt_f32 vcc, s{S_THR}, v{V_PS1}")
            a.e(f"s_cbranch_vccnz K2_slow1{sfx}")
            a.label(f"K2_ok1{sfx}")
            a.e(f"v_add_f32 v{V_L+1}, v{V_L+1}, v{V_PS1}")
        if not last:
            a.e(f"s_cmp_lg_u32 s{S_POST}, 0")
            a.e(f"s_cbranch_scc1 K2_post{sfx}")
            a.label(f"K2_postret{sfx}")
        if DIAG: a.e("s_memtime s[86:87]")
        side = Rec()
        if not last and DMAM:
            for part in ([1, 2] if DMAM == 2 else [2]):
                side.e(f"s_add_u32 m0, s{S_XG}, {0 if part == 1 else 16384}")
                for q4 in range(4):
                    side.e(f"buffer_load_dwordx4 v{V_LANE16}, s[{SRD_KV}:{SRD_KV+3}], s{S_T2 if part == 1 else S_T3} offen offset:{1024*q4} lds")
        if SPLIT: exp_block(side, 1, S1[p], False)
        def after_qk():
            if SPLIT:
                a.e(f"v_cmp_ngt_f32 vcc, s{S_THR}, v{V_PS1}")
                a.e(f"s_cbranch_vccnz K2_slow1{sfx}")
                a.label(f"K2_ok1{sfx}")
                a.e(f"v_add_f32 v{V_L+1}, v{V_L+1}, v{V_PS1}")
            if not last:
                scal_next()
        m_phase(fl, 0, p ^ 1, side, after_qk)
        if not last: a.e(f"v_xor_b32 v{V_RD}, 0x8000, v{V_RD}")

    def xlane(op, r0, t0, n=2):
        for sw in ("v_permlane32_swap_b32", "v_permlane16_swap_b32"):
            for k in range(n): a.e(f"v_mov_b32 v{t0+k}, v{r0+k}")
            a.e("s_nop 1")
            for k in range(n): a.e(f"{sw} v{r0+k}, v{t0+k}")
            a.e("s_nop 1")
            for k in range(n): a.e(f"{op} v{r0+k}, v{r0+k}, v{t0+k}")
    def rowmax(d, b):
        a.e(f"v_max3_f32 v{d}, v{b}, v{b+1}, v{b+2}")
        for r in range(3, 15, 2): a.e(f"v_max3_f32 v{d}, v{d}, v{b+r}, v{b+r+1}")
        a.e(f"v_max_f32 v{d}, v{d}, v{b+15}")
    def outofline(sfx, p, last):
        SB = [S0, S1[p]]
        a.label(f"K2_spec{sfx}")
        a.e(f"s_cmp_eq_u32 s{S_FIN}, 0")
        a.e(f"s_cbranch_scc1 K2_nofin{sfx}")
        xlane("v_add_f32", V_L, TT)
        a.e(f"v_rcp_f32 v{TT}, v{V_L}")
        a.e(f"v_rcp_f32 v{TT+1}, v{V_L+1}")
        a.e(f"v_mov_b32 v{V_L}, 0")
        a.e(f"v_mov_b32 v{V_L+1}, 0")
        a.e(f"s_mov_b32 s{S_FIN}, 0")
        for r in range(64): a.e(f"v_mul_f32 v{O0+r}, v{O0+r}, v{TT + (r >> 5)}")
        store_ctx(S_ROWB, 'c')
        for r in range(64): a.e(f"v_mov_b32 v{O0+r}, 0")
        a.label(f"K2_nofin{sfx}")
        a.e(f"s_add_u32 s{S_T1}, s{S_XL}, 63")
        a.e(f"s_cmp_gt_u32 s{S_T1}, s{S_ROW0}")
        a.e(f"s_cbranch_scc0 K2_nomask{sfx}")
        a.e(f"s_sub_u32 s{S_T1}, s{S_ROW0}, s{S_XL}")
        a.e(f"v_add_u32 v{V_D}, s{S_T1}, v{V_COL}")
        a.e(f"v_mov_b32 v{TT+11}, s{S_NEG}")
        for g in range(8):
            qt, kt = g >> 2, g & 3
            for k in range(4):
                a.e(f"v_cmp_le_i32 s[{S_M+2*k}:{S_M+2*k+1}], {16*kt + k - 16*qt}, v{V_D}")
            for k in range(4):
                r = SB[qt] + kt * 4 + k
                a.e(f"v_cndmask_b32 v{r}, v{TT+11}, v{r}, s[{S_M+2*k}:{S_M+2*k+1}]")
        a.label(f"K2_nomask{sfx}")
        a.e(f"s_cmp_eq_u32 s{S_FIRST}, 0")
        a.e(f"s_cbranch_scc1 K2_exp{sfx}")
        rowmax(TT, SB[0]); rowmax(TT + 1, SB[1])
        xlane("v_max_f32", TT, TT + 2)
        for qt in range(2):
            a.e(f"v_max_f32 v{TT+qt}, {f2u(-1.0e20)}, v{TT+qt}")
            a.e(f"v_add_f32 v{V_M+qt}, v{V_M+qt}, v{TT+qt}")
            a.e(f"v_sub_f32 v{NM0+4*qt}, 0, v{V_M+qt}")
            for r in range(1, 4): a.e(f"v_mov_b32 v{NM0+4*qt+r}, v{NM0+4*qt}")
            for r in range(16): a.e(f"v_sub_f32 v{SB[qt]+r}, v{SB[qt]+r}, v{TT+qt}")
        a.e(f"s_mov_b32 s{S_FIRST}, 0")
        a.e(f"s_branch K2_exp{sfx}")
        a.label(f"K2_chk{sfx}")
        a.e(f"s_cmp_lg_u32 s{S_NOCHK}, 0")
        a.e(f"s_mov_b32 s{S_NOCHK}, 0")
        a.e(f"s_cbranch_scc1 K2_ok{sfx}")
        rowmax(TT, S0)
        xlane("v_max_f32", TT, TT + 2, 1)
        a.e(f"v_max_f32 v{TT}, 0, v{TT}")
        a.e(f"v_exp_f32 v{TT+2}, -v{TT}")
        a.e(f"v_add_f32 v{V_M}, v{V_M}, v{TT}")
        a.e(f"v_mul_f32 v{V_L}, v{V_L}, v{TT+2}")
        for r in range(32): a.e(f"v_mul_f32 v{O0+r}, v{O0+r}, v{TT+2}")
        a.e(f"v_sub_f32 v{NM0}, 0, v{V_M}")
        for r in range(1, 4): a.e(f"v_mov_b32 v{NM0+r}, v{NM0}")
        for r in range(16): a.e(f"v_sub_f32 v{S0+r}, v{S0+r}, v{TT}")
        exp_block(a, 0, S0, False)
        a.e(f"s_branch K2_ok{sfx}")
        a.label(f"K2_slow1{sfx}")
        rowmax(TT, S1[p])
        xlane("v_max_f32", TT, TT + 2, 1)
        a.e(f"v_max_f32 v{TT}, 0, v{TT}")
        a.e(f"v_exp_f32 v{TT+2}, -v{TT}")
        a.e("s_nop 0")
        a.e(f"v_mul_f32 v{V_L+1}, v{V_L+1}, v{TT+2}")
        for r in range(32): a.e(f"v_mul_f32 v{O0+32+r}, v{O0+32+r}, v{TT+2}")
        for r in range(16): a.e(f"v_sub_f32 v{S1[p]+r}, v{S1[p]+r}, v{TT}")
        if SPLIT:
            a.e(f"s_cmp_lg_u32 s{S_FIN}, 0")
            a.e(f"s_cbranch_scc1 K2_s1n{sfx}")
        a.e(f"v_add_f32 v{V_M+1}, v{V_M+1}, v{TT}")
        a.e(f"v_sub_f32 v{NM0+4}, 0, v{V_M+1}")
        for r in range(1, 4): a.e(f"v_mov_b32 v{NM0+4+r}, v{NM0+4}")
        if not last and SPLIT:
            for r in range(16): a.e(f"v_sub_f32 v{S1[p^1]+r}, v{S1[p^1]+r}, v{TT}")
        a.label(f"K2_s1n{sfx}")
        exp_block(a, 1, S1[p], False)
        a.e("s_nop 1")
        a.e(f"s_branch K2_ok1{sfx}")
        if not last:
            a.label(f"K2_post{sfx}")
            a.e(f"s_cmp_eq_u32 s{S_J}, s{S_SW}")
            a.e(f"s_cbranch_scc0 K2_nosw{sfx}")
            for k in range(8):
                a.e(f"ds_read_b128 v[{Q0+4*k}:{Q0+4*k+3}], v{V_XR} offset:{1024*k}")
            for r in range(10): a.e(f"v_mov_b32 v{NM0+r}, 0")
            a.e(f"s_mov_b32 s{S_FIRST}, 1")
            a.e(f"s_mov_b32 s{S_FIN}, 1")
            a.e(f"s_mov_b32 s{S_ROW0}, s{S_ROWA}")
            a.e("s_waitcnt lgkmcnt(0)")
            a.label(f"K2_nosw{sfx}")
            if p == 1:
                a.e(f"s_cmp_eq_u32 s{S_J}, 15")
                a.e(f"s_cbranch_scc1 K2_pf")
            a.e(f"s_branch K2_postret{sfx}")

    def pf_block():
        a.label("K2_pf")
        a.e(f"s_lshl_b32 s{S_T0}, s2, 3")
        a.e(f"s_add_u32 s{S_T0}, s{S_T0}, s{S_WAVE}")
        a.e(f"s_lshl_b32 s{S_T1}, s{S_T0}, 11")
        srd(a, SRD_X, P['wo'], P['wo'] + 1, 4096 * 512 * 2)
        a.e(f"buffer_load_dwordx4 v[216:219], v{V_LANE16}, s[{SRD_X}:{SRD_X+3}], s{S_T1} offen")
        a.e(f"buffer_load_dwordx4 v[216:219], v{V_LANE16}, s[{SRD_X}:{SRD_X+3}], s{S_T1} offen offset:1024")
        a.e(f"s_and_b32 s{S_T1}, s{S_T0}, 511")
        a.e(f"s_lshl_b32 s{S_T1}, s{S_T1}, 10")
        a.e(f"s_bitcmp1_b32 s{S_T0}, 9")
        a.e(f"s_cselect_b32 s{SRD_WQ}, s{P['Cre']}, s{P['Cim']}")
        a.e(f"s_cselect_b32 s{SRD_WQ+1}, s{P['Cre']+1}, s{P['Cim']+1}")
        a.e(f"s_and_b32 s{SRD_WQ+1}, s{SRD_WQ+1}, 0xffff")
        a.e(f"s_mov_b32 s{SRD_WQ+2}, {512*512*2}")
        a.e(f"s_mov_b32 s{SRD_WQ+3}, 0x00020000")
        a.e(f"buffer_load_dwordx4 v[216:219], v{V_LANE16}, s[{SRD_WQ}:{SRD_WQ+3}], s{S_T1} offen")
        a.e("s_branch K2_postretB")
    a.e(f"v_xor_b32 v{V_RD}, 0x8000, v{V_RD}")
    scal_dma()
    a.label("K2_loop")
    body("A", 0, False)
    body("B", 1, False)
    a.e(f"s_cmp_lt_u32 s{S_J}, 16")
    a.e("s_cbranch_scc1 K2_loop")
    body("Z", 0, True)
    a.e(f"s_lshl_b32 s{S_T0}, s{S_WQ}, 14")
    a.e(f"s_add_u32 s{S_T0}, s{S_T0}, 65536")
    a.e(f"v_add_u32 v{TT+2}, s{S_T0}, v{V_LANE16}")
    a.e(f"s_lshl_b32 s{S_T0}, s{S_WQ}, 10")
    a.e(f"s_add_u32 s{S_T0}, s{S_T0}, {LDS_QST}")
    a.e(f"v_add_u32 v{TT+3}, s{S_T0}, v{V_LANE16}")
    a.e("s_barrier")
    if DIAG:
        a.e("s_memtime s[96:97]")
        a.e("s_waitcnt lgkmcnt(0)")
        a.e("v_writelane_b32 v255, s0, 37")
        a.e("v_writelane_b32 v255, s96, 38")
        a.e("s_memrealtime s[96:97]")
        a.e("s_waitcnt lgkmcnt(0)")
        a.e("v_writelane_b32 v255, s96, 62")
        a.e(f"s_lshl_b32 s{S_T0}, s2, 3")
        a.e(f"s_add_u32 s{S_T0}, s{S_T0}, s{S_WAVE}")
        a.e(f"s_lshl_b32 s{S_T0}, s{S_T0}, 8")
        a.e(f"s_add_u32 s{S_T0}, s{S_T0}, {63 << 20}")
        a.e(f"v_lshrrev_b32 v{TT+4}, 2, v{V_LANE16}")
        a.e(f"buffer_store_dword v255, v{TT+4}, s[{SRD_O}:{SRD_O+3}], s{S_T0} offen")
    a.e(f"s_cmp_eq_u32 s{S_GRP}, 0")
    a.e("s_cbranch_scc1 K2_merge")
    a.e(f"ds_write_b128 v{TT+3}, v[{V_M}:{V_M+3}]")
    for k in range(16):
        a.e(f"ds_write_b128 v{TT+2}, v[{O0+4*k}:{O0+4*k+3}] offset:{1024*k}")
    a.e("s_waitcnt vmcnt(0) lgkmcnt(0)")
    a.e("s_barrier")
    rt_end(a, 100, 1, SRD_O, S_WAVE)
    a.e("s_endpgm")
    a.label("K2_merge")
    ML = 156
    a.e(f"ds_read_b128 v[{ML}:{ML+3}], v{TT+3}")
    for k in range(16):
        a.e(f"ds_read_b128 v[{64+4*k}:{64+4*k+3}], v{TT+2} offset:{1024*k}")
    a.e("s_waitcnt lgkmcnt(15)")
    for qt in range(2):
        a.e(f"v_max_f32 v{TT}, v{V_M+qt}, v{ML+qt}")
        a.e(f"v_sub_f32 v{TT+4+qt}, v{V_M+qt}, v{TT}")
        a.e(f"v_sub_f32 v{TT+6+qt}, v{ML+qt}, v{TT}")
    for k in range(4): a.e(f"v_exp_f32 v{TT+4+k}, v{TT+4+k}")
    a.e("s_nop 0")
    for qt in range(2):
        a.e(f"v_mul_f32 v{TT+8+qt}, v{TT+4+qt}, v{V_L+qt}")
        a.e(f"v_fmac_f32 v{TT+8+qt}, v{TT+6+qt}, v{ML+2+qt}")
    for sw in ("v_permlane32_swap_b32", "v_permlane16_swap_b32"):
        a.e(f"v_mov_b32 v{TT}, v{TT+8}")
        a.e(f"v_mov_b32 v{TT+1}, v{TT+9}")
        a.e("s_nop 1")
        a.e(f"{sw} v{TT+8}, v{TT}")
        a.e(f"{sw} v{TT+9}, v{TT+1}")
        a.e("s_nop 1")
        a.e(f"v_add_f32 v{TT+8}, v{TT+8}, v{TT}")
        a.e(f"v_add_f32 v{TT+9}, v{TT+9}, v{TT+1}")
    a.e(f"v_rcp_f32 v{TT+8}, v{TT+8}")
    a.e(f"v_rcp_f32 v{TT+9}, v{TT+9}")
    a.e("s_nop 0")
    for qt in range(2):
        a.e(f"v_mul_f32 v{TT+4+qt}, v{TT+4+qt}, v{TT+8+qt}")
        a.e(f"v_mul_f32 v{TT+6+qt}, v{TT+6+qt}, v{TT+8+qt}")
    for r in range(64): a.e(f"v_mul_f32 v{O0+r}, v{O0+r}, v{TT+4+(r>>5)}")
    a.e("s_waitcnt lgkmcnt(0)")
    for r in range(64): a.e(f"v_fmac_f32 v{O0+r}, v{64+r}, v{TT+6+(r>>5)}")
    store_ctx(S_ROWA, 'c')
    rt_end(a, 100, 1, SRD_O, S_WAVE)
    a.label("K2_exit")
    a.e("s_endpgm")
    outofline('A', 0, False)
    outofline('B', 1, False)
    outofline('Z', 0, True)
    pf_block()
    a.label('K2e')
    return kernel_wrap("k2_kernel", a.text(), 256, 256)
```

```python
from common import *
P = dict(A_x=16, ckv=18, wq=20, wuk=22, wuv=24, wo=26, Bx=28, Lre=30, Lim=32, Bre=34, Bim=36, Cre=38, Cim=40,
         logdt=42, Dskip=44, out=46, dbg=48, ws=50)
S_WAVE = 3
SRD_WS = 64
S_RT, S_CT = 4, 72
S_T0, S_T1, S_T2, S_T3 = 6, 7, 8, 9
S_LB, S_CG, S_WG, S_IT, S_HG, S_CC = 10, 11, 12, 13, 14, 15
SRD_WO, SRD_CR, SRD_CI, SRD_OUT, SRD_BX, SRD_DS = 52, 56, 60, 68, 76, 80
S_OB, S_XB, S_U0, S_OBB = 73, 74, 75, 84
DEPTH = 6
WSZ = 20480; CST = 12288
ACA, ACB = 0, 64
CF0 = 128
HF0 = 176
BF0 = 200
WF0 = 208
CI0 = 224
V_L16, V_WD, V_TR, V_CD, V_CR0, V_OO, V_XBO, V_DSO, V_PW, V_RA, X, Y, L = 240, 241, 242, 243, 244, 245, 246, 247, 248, 249, 250, 251, 255
V_OB, V_PB, V_RB = 252, 253, 254

LAUNCH = "; @launch kernel=k3_kernel grid=(256,1,1) block=(512,1,1) lds=163840"
DIAG = False
import os
AB3 = os.environ.get('AB3', '')
CPF = False
STF3 = os.environ.get('STF3', '')
def gen_k3():
    a = Asm()
    a.e("s_cmp_ge_u32 s2, 256")
    a.e("s_cbranch_scc1 K3_exit")
    a.e("s_load_dwordx16 s[16:31], s[0:1], 0")
    a.e("s_load_dwordx16 s[32:47], s[0:1], 64")
    a.e("s_load_dwordx4 s[48:51], s[0:1], 128")
    a.e("v_lshrrev_b32 v1, 6, v0")
    a.e("s_nop 0")
    a.e("v_readfirstlane_b32 s3, v1")
    a.e(f"v_mbcnt_lo_u32_b32 v{L}, -1, 0")
    a.e(f"v_mbcnt_hi_u32_b32 v{L}, -1, v{L}")
    a.e(f"s_bfe_u32 s{S_T0}, s2, 0x20001")
    a.e(f"s_lshl_b32 s{S_T0}, s{S_T0}, 3")
    a.e(f"s_bfe_u32 s{S_T1}, s2, 0x30003")
    a.e(f"s_add_u32 s{S_RT}, s{S_T0}, s{S_T1}")
    a.e(f"s_and_b32 s{S_T0}, s2, 1")
    a.e(f"s_lshl_b32 s{S_T0}, s{S_T0}, 2")
    a.e(f"s_lshr_b32 s{S_T1}, s2, 6")
    a.e(f"s_add_u32 s{S_CT}, s{S_T0}, s{S_T1}")
    a.e(f"v_lshlrev_b32 v{V_L16}, 4, v{L}")
    a.e(f"s_mul_i32 s{S_LB}, s{S_WAVE}, {WSZ}")
    a.e(f"v_lshrrev_b32 v{X}, 2, v{L}")
    a.e(f"v_lshlrev_b32 v{V_WD}, 10, v{X}")
    a.e(f"v_and_b32 v{X}, 3, v{L}")
    a.e(f"v_lshrrev_b32 v{Y}, 4, v{L}")
    a.e(f"v_xor_b32 v{Y}, v{X}, v{Y}")
    a.e(f"v_lshl_add_u32 v{V_CD}, v{Y}, 4, v{V_WD}")
    a.e(f"v_lshl_add_u32 v{V_WD}, v{X}, 4, v{V_WD}")
    a.e(f"s_lshl_b32 s{S_CC}, s{S_CT}, 16")
    a.e(f"s_lshl_b32 s{S_T0}, s{S_WAVE}, 7")
    a.e(f"s_add_u32 s{S_CC}, s{S_CC}, s{S_T0}")
    a.e(f"s_lshl_b32 s{S_HG}, s{S_RT}, 17")
    a.e(f"s_lshl_b32 s{S_T0}, s{S_WAVE}, 13")
    a.e(f"s_add_u32 s{S_HG}, s{S_HG}, s{S_T0}")
    a.e(f"s_add_u32 s{S_HG}, s{S_HG}, {HF_OFF}")
    a.e(f"s_lshl_b32 s{S_CG}, s{S_RT}, 19")
    a.e(f"s_lshl_b32 s{S_T0}, s{S_WAVE}, 15")
    a.e(f"s_add_u32 s{S_CG}, s{S_CG}, s{S_T0}")
    a.e(f"s_add_u32 s{S_CG}, s{S_CG}, {CTX_OFF}")
    a.e(f"s_lshl_b32 s{S_WG}, s{S_WAVE}, 19")
    a.e(f"s_lshl_b32 s{S_T0}, s{S_CT}, 7")
    a.e(f"s_add_u32 s{S_WG}, s{S_WG}, s{S_T0}")
    a.e("s_waitcnt lgkmcnt(0)")
    rt_start(a, 90)
    srd(a, SRD_WS, P['ws'], P['ws'] + 1, 64 << 20)
    srd(a, SRD_WO, P['wo'], P['wo'] + 1, 4096 * 512 * 2)
    srd(a, SRD_CR, P['Cre'], P['Cre'] + 1, 512 * 512 * 2)
    srd(a, SRD_CI, P['Cim'], P['Cim'] + 1, 512 * 512 * 2)

    def w_issue(k):
        pos = (k % DEPTH) >> 1
        a.e(f"s_add_u32 m0, s{S_LB}, {pos*4096 + (k&1)*1024}")
        a.e(f"s_add_u32 s{S_T2}, s{S_WG}, {k*16384}")
        if 'nowo' not in AB3: a.vm(f"buffer_load_dwordx4 v{V_WD}, s[{SRD_WO}:{SRD_WO+3}], s{S_T2} offen lds", ('c', k))
        a.e(f"s_add_u32 m0, s{S_LB}, {pos*4096 + (k&1)*1024 + 2048}")
        a.e(f"s_add_u32 s{S_T2}, s{S_T2}, 64")
        if 'nowo' not in AB3: a.vm(f"buffer_load_dwordx4 v{V_WD}, s[{SRD_WO}:{SRD_WO+3}], s{S_T2} offen lds", ('c', k))
    def c_issue(k):
        r = CF0 + (k % DEPTH) * 8
        a.e(f"s_add_u32 s{S_T0}, s{S_CG}, {k*1024}")
        a.e(f"s_add_u32 s{S_T1}, s{S_CG}, {k*1024 + 262144}")
        if 'noctx' in AB3: return
        if 'same' in AB3:
            a.e(f"s_and_b32 s{S_T0}, s{S_T0}, 0x20fffff")
            a.e(f"s_and_b32 s{S_T1}, s{S_T1}, 0x20fffff")
        a.vm(f"buffer_load_dwordx4 v[{r}:{r+3}], v{V_L16}, s[{SRD_WS}:{SRD_WS+3}], s{S_T0} offen", ('c', k))
        a.vm(f"buffer_load_dwordx4 v[{r+4}:{r+7}], v{V_L16}, s[{SRD_WS}:{SRD_WS+3}], s{S_T1} offen", ('c', k))
    def w_read(k):
        pos = (k % DEPTH) >> 1
        a.wait(vm=('c', k | 1))
        r = WF0 + (k & 1) * 8
        for un in range(2):
            o = pos*4096 + un*2048 + (k & 1) * 512
            a.ds(f"ds_read_b64_tr_b16 v[{r+un*4}:{r+un*4+1}], v{V_TR} offset:{o}", ('w', k))
            a.ds(f"ds_read_b64_tr_b16 v[{r+un*4+2}:{r+un*4+3}], v{V_TR} offset:{o + 1024}", ('w', k))
    def c_dma(rnd):
        for mat in range(2):
            sd = SRD_CR if mat == 0 else SRD_CI
            for q in range(4):
                a.e(f"s_add_u32 m0, s{S_LB}, {CST + mat*4096 + q*1024}")
                a.e(f"s_add_u32 s{S_T0}, s{S_CC}, {rnd*64 + q*16384}")
                a.vm(f"buffer_load_dwordx4 v{V_CD}, s[{sd}:{sd+3}], s{S_T0} offen lds", ('cd', rnd))
    def h_issue(k):
        a.e(f"s_add_u32 s{S_T0}, s{S_HG}, {k*1024}")
        a.e(f"s_add_u32 s{S_T1}, s{S_HG}, {k*1024 + 65536}")
        r = HF0 + (k % 3) * 8
        a.vm(f"buffer_load_dwordx4 v[{r}:{r+3}], v{V_L16}, s[{SRD_WS}:{SRD_WS+3}], s{S_T0} offen", ('h', k))
        a.vm(f"buffer_load_dwordx4 v[{r+4}:{r+7}], v{V_L16}, s[{SRD_WS}:{SRD_WS+3}], s{S_T1} offen", ('h', k))

    c_dma(0)
    for k in range(3): h_issue(k)
    for k in range(DEPTH): c_issue(k); w_issue(k)
    if CPF:
        code_prefetch(a, "K3c", "K3e", 12288, 8, S_WAVE, V_L16, CI0, CI0 + 4, 86)
    srd(a, SRD_OUT, P['out'], P['out'] + 1, 2048 * 1024 * 4)
    srd(a, SRD_BX, P['Bx'], P['Bx'] + 1, 2048 * 512 * 2)
    srd(a, SRD_DS, P['Dskip'], P['Dskip'] + 1, 1024)
    a.e(f"v_lshrrev_b32 v{X}, 5, v{L}")
    a.e(f"v_lshlrev_b32 v{V_TR}, 8, v{X}")
    a.e(f"v_bfe_u32 v{X}, v{L}, 2, 2")
    a.e(f"v_lshl_add_u32 v{V_TR}, v{X}, 6, v{V_TR}")
    a.e(f"v_bfe_u32 v{X}, v{L}, 4, 1")
    a.e(f"v_lshl_add_u32 v{V_TR}, v{X}, 5, v{V_TR}")
    a.e(f"v_and_b32 v{X}, 3, v{L}")
    a.e(f"v_lshl_add_u32 v{V_TR}, v{X}, 3, v{V_TR}")
    a.e(f"v_add_u32 v{V_TR}, s{S_LB}, v{V_TR}")
    a.e(f"v_and_b32 v{X}, 31, v{L}")
    a.e(f"v_lshlrev_b32 v{Y}, 6, v{X}")
    a.e(f"s_add_u32 s{S_T0}, s{S_LB}, {CST}")
    a.e(f"v_add_u32 v{Y}, s{S_T0}, v{Y}")
    a.e(f"v_bfe_u32 v{Y+1}, v{L}, 2, 2")
    a.e(f"v_lshrrev_b32 v{Y+2}, 5, v{L}")
    a.e(f"v_xor_b32 v{Y+1}, v{Y+1}, v{Y+2}")
    a.e(f"v_lshl_add_u32 v{V_CR0}, v{Y+1}, 4, v{Y}")
    a.e(f"s_mov_b32 s{S_T3}, 0x05040100")
    a.e(f"s_mov_b32 s{S_IT}, 0x07060302")
    a.e(f"s_lshl_b32 s{S_T0}, s{S_CT}, 6")
    a.e(f"s_bfe_u32 s{S_T1}, s{S_WAVE}, 0x10001")
    a.e(f"s_lshl_b32 s{S_T1}, s{S_T1}, 5")
    a.e(f"s_add_u32 s{S_T0}, s{S_T0}, s{S_T1}")
    a.e(f"s_lshl_b32 s{S_T1}, s{S_RT}, 6")
    a.e(f"s_lshr_b32 s{S_T2}, s{S_WAVE}, 2")
    a.e(f"s_lshl_b32 s{S_T2}, s{S_T2}, 5")
    a.e(f"s_add_u32 s{S_T1}, s{S_T1}, s{S_T2}")
    a.e(f"s_and_b32 s{S_T2}, s{S_WAVE}, 1")
    a.e(f"s_lshl_b32 s{S_T2}, s{S_T2}, 4")
    a.e(f"s_add_u32 s{S_T1}, s{S_T1}, s{S_T2}")
    a.e(f"v_add_u32 v{X}, s{S_T0}, v{X}")
    a.e(f"v_lshlrev_b32 v{V_OO}, 2, v{X}")
    a.e(f"v_lshl_add_u32 v{V_OO}, v{Y+2}, 14, v{V_OO}")
    a.e(f"s_lshl_b32 s{S_OB}, s{S_T1}, 12")
    a.e(f"v_and_b32 v{X}, 31, v{L}")
    a.e(f"s_lshl_b32 s{S_T0}, s{S_CT}, 6")
    a.e(f"s_lshr_b32 s{S_T1}, s{S_WAVE}, 2")
    a.e(f"s_lshl_b32 s{S_T1}, s{S_T1}, 5")
    a.e(f"s_add_u32 s{S_T0}, s{S_T0}, s{S_T1}")
    a.e(f"v_add_u32 v{X}, s{S_T0}, v{X}")
    a.e(f"v_lshlrev_b32 v{V_DSO}, 1, v{X}")
    a.e(f"v_lshl_add_u32 v{V_XBO}, v{Y+2}, 12, v{V_DSO}")
    a.e(f"v_lshlrev_b32 v{V_OB}, 2, v{X}")
    a.e(f"v_lshl_add_u32 v{V_OB}, v{Y+2}, 14, v{V_OB}")
    a.e(f"s_lshl_b32 s{S_T1}, s{S_RT}, 6")
    a.e(f"s_and_b32 s{S_T2}, s{S_WAVE}, 3")
    a.e(f"s_lshl_b32 s{S_T2}, s{S_T2}, 3")
    a.e(f"s_add_u32 s{S_T1}, s{S_T1}, s{S_T2}")
    a.e(f"s_lshl_b32 s{S_OBB}, s{S_T1}, 12")
    a.e(f"s_lshl_b32 s{S_XB}, s{S_T1}, 10")
    a.e(f"s_add_u32 s{S_T0}, s{S_LB}, {CST}")
    a.e(f"v_add_u32 v{V_PB}, s{S_T0}, v{V_L16}")
    a.e(f"s_lshl_b32 s{S_T0}, s{S_WAVE}, 10")
    a.e(f"s_add_u32 s{S_T0}, s{S_T0}, {CST}")
    a.e(f"v_add_u32 v{V_RB}, s{S_T0}, v{V_L16}")
    a.e(f"s_lshl_b32 s{S_T0}, s{S_WAVE}, 14")
    a.e(f"v_add_u32 v{V_PW}, s{S_T0}, v{V_L16}")
    a.e(f"s_lshl_b32 s{S_T0}, s{S_WAVE}, 11")
    a.e(f"v_add_u32 v{V_RA}, s{S_T0}, v{V_L16}")
    BW = CI0
    def b_group(G):
        rnd, Gp = G >> 1, G & 1
        if Gp == 0: a.wait(vm=('cd', rnd))
        if Gp: a.e(f"v_xor_b32 v{X}, 32, v{V_CR0}")
        va = X if Gp else V_CR0
        for un in range(2):
            for mat in range(2):
                r = CI0 + (un * 2 + mat) * 4
                a.ds(f"ds_read_b128 v[{r}:{r+3}], v{va} offset:{mat*4096 + un*2048}", ('cr', G))
        a.wait(lg=('cr', G))
        for st in range(2):
            k = 2 * G + st
            for un in range(2):
                re, im = CI0 + un * 8 + 2 * st, CI0 + un * 8 + 4 + 2 * st
                w = BF0 + un * 4
                a.e(f"v_perm_b32 v{w}, v{im}, v{re}, s{S_T3}")
                a.e(f"v_perm_b32 v{w+1}, v{im}, v{re}, s{S_IT}")
                a.e(f"v_perm_b32 v{w+2}, v{im+1}, v{re+1}, s{S_T3}")
                a.e(f"v_perm_b32 v{w+3}, v{im+1}, v{re+1}, s{S_IT}")
            a.e("s_nop 1")
            a.wait(vm=('h', k))
            for mt in range(2):
                for un in range(2):
                    D = vr(ACB + (mt * 2 + un) * 16, 16)
                    a.e(mfma(D, vr(HF0 + (k % 3) * 8 + mt * 4, 4), vr(BF0 + un * 4, 4), "0" if k == 0 else D))
            if k + 3 < 8: h_issue(k + 3)
    NKA = 32
    XB = HF0
    def xb_loads():
        a.vm(f"buffer_load_ushort v{XB+8}, v{V_DSO}, s[{SRD_DS}:{SRD_DS+3}], 0 offen", 'xb')
        for ps in range(2):
            a.e(f"s_add_u32 s{S_U0}, s{S_XB}, {ps * 32768}")
            for r in range(4):
                a.vm(f"buffer_load_ushort v{XB+ps*4+r}, v{V_XBO}, s[{SRD_BX}:{SRD_BX+3}], s{S_U0} offen offset:{r * 1024}", 'xb')
    def b_write(ps):
        for t in range(2):
            for g in range(4):
                r = ACB + (2 * ps + t) * 16 + 4 * g
                a.ds(f"ds_write_b128 v{V_PB}, v[{r}:{r+3}] offset:{t*4096 + g*1024}", 'bw')
        a.wait(lg='bw')
        a.e("s_barrier")
    def b_reduce(ps):
        d = ACB + ps * 32
        for w in range(8):
            if w: a.e(f"v_add_u32 v{X}, {w * WSZ}, v{V_RB}")
            a.ds(f"ds_read_b128 v[{d+4*w}:{d+4*w+3}], v{X if w else V_RB}", 'br')
        a.wait(lg='br')
        a.e("s_barrier")
        for st in (16, 8, 4):
            for r in range(st): a.e(f"v_add_f32 v{d+r}, v{d+r}, v{d+st+r}")
        a.wait(vm='xb')
        x = XB + ps * 4
        if ps == 0:
            a.e(f"v_lshlrev_b32 v{XB+8}, 16, v{XB+8}")
        for r in range(4):
            a.e(f"v_lshlrev_b32 v{x+r}, 16, v{x+r}")
            a.e(f"v_mul_f32 v{x+r}, v{x+r}, v{XB+8}")
        for r in (0, 2):
            a.e(f"v_cvt_pk_bf16_f32 v{x+r}, v{x+r}, v{x+r+1}")
            a.e(f"v_and_b32 v{x+r+1}, 0xffff0000, v{x+r}")
            a.e(f"v_lshlrev_b32 v{x+r}, 16, v{x+r}")
            a.e(f"v_add_f32 v{d+r}, v{d+r}, v{x+r}")
            a.e(f"v_add_f32 v{d+r+1}, v{d+r+1}, v{x+r+1}")
        a.e(f"s_add_u32 s{S_U0}, s{S_OBB}, {ps * 131072}")
        for r in range(4):
            a.vm(f"buffer_store_dword v{d+r}, v{V_OB}, s[{SRD_OUT}:{SRD_OUT+3}], s{S_U0} offen offset:2048 {STF3}", 'o')
            if r < 3: a.e(f"s_add_u32 s{S_U0}, s{S_U0}, 4096")
    hooks = {3: lambda: b_group(0), 5: lambda: (b_group(1), c_dma(1)), 12: lambda: b_group(2), 14: lambda: (b_group(3), xb_loads()),
             17: lambda: b_write(0), 19: lambda: b_reduce(0), 21: lambda: b_write(1), 23: lambda: b_reduce(1)}
    w_read(0)
    for k in range(NKA):
        if k + 1 < NKA: w_read(k + 1)
        a.wait(lg=('w', k))
        for mt in range(2):
            for un in range(2):
                D = vr(ACA + (mt * 2 + un) * 16, 16)
                a.e(mfma(D, vr(CF0 + (k % DEPTH) * 8 + mt * 4, 4), vr(WF0 + (k & 1) * 8 + un * 4, 4), "0" if k == 0 else D))
        if (k & 1) and k + DEPTH < NKA:
            c_issue(k + DEPTH - 1); w_issue(k + DEPTH - 1); c_issue(k + DEPTH); w_issue(k + DEPTH)
        if k in hooks: hooks[k]()
    a.e(f"v_add_u32 v{X}, 0x10000, v{V_RA}")
    a.e("s_nop 7")
    a.e("s_barrier")
    for t in range(4):
        for g in range(4):
            a.e(f"ds_write_b128 v{V_PW}, v[{ACA+t*16+4*g}:{ACA+t*16+4*g+3}] offset:{t*4096 + g*1024}")
    a.e("s_waitcnt lgkmcnt(0)")
    a.e("s_barrier")
    dst = ACA
    for w in range(8):
        for g in range(2):
            r = dst + w * 8 + 4 * g
            a.e(f"ds_read_b128 v[{r}:{r+3}], v{V_RA if w < 4 else X} offset:{(w & 3) * 16384 + g * 1024}")
    a.e("s_waitcnt lgkmcnt(0)")
    for st in (32, 16, 8):
        for r in range(st): a.e(f"v_add_f32 v{dst+r}, v{dst+r}, v{dst+st+r}")
    for r in range(0, 8, 2):
        a.e(f"v_cvt_pk_bf16_f32 v{CF0+r}, v{dst+r}, v{dst+r+1}")
        a.e(f"v_and_b32 v{CF0+r+1}, 0xffff0000, v{CF0+r}")
        a.e(f"v_lshlrev_b32 v{CF0+r}, 16, v{CF0+r}")
    for r in range(8):
        if (r & 3) == 0: a.e(f"s_add_u32 s{S_U0}, s{S_OB}, {8 * (r >> 2) * 4096}")
        else: a.e(f"s_add_u32 s{S_U0}, s{S_U0}, 4096")
        a.e(f"buffer_store_dword v{CF0+r}, v{V_OO}, s[{SRD_OUT}:{SRD_OUT+3}], s{S_U0} offen {STF3}")
    rt_end(a, 90, 2, SRD_WS, S_WAVE)
    a.label("K3_exit")
    a.e("s_endpgm")
    a.label("K3e")
    return kernel_wrap("k3_kernel", a.text(), 256, 256)
```

```python
from common import *
P = dict(A_x=16, ckv=18, wq=20, wuk=22, wuv=24, wo=26, Bx=28, Lre=30, Lim=32, Bre=34, Bim=36, Cre=38, Cim=40,
         logdt=42, Dskip=44, out=46, dbg=48, ws=50)
S_WAVE = 3
SRD_WS = 64
S_RT, S_CT = 4, 72
S_T0, S_T1, S_T2, S_T3 = 6, 7, 8, 9
S_LB, S_CG, S_WG, S_IT, S_HG, S_CC = 10, 11, 12, 13, 14, 15
SRD_WO, SRD_CR, SRD_CI, SRD_OUT, SRD_BX, SRD_DS = 52, 56, 60, 68, 76, 80
S_OB, S_XB, S_U0, S_OBB = 73, 74, 75, 84
DEPTH = 6
WSZ = 20480; CST = 12288
ACA, ACB = 0, 64
CF0 = 128
HF0 = 176
BF0 = 200
WF0 = 208
CI0 = 224
V_L16, V_WD, V_TR, V_CD, V_CR0, V_OO, V_XBO, V_DSO, V_PW, V_RA, X, Y, L = 240, 241, 242, 243, 244, 245, 246, 247, 248, 249, 250, 251, 255
V_OB, V_PB, V_RB = 252, 253, 254

LAUNCH = "; @launch kernel=k3_kernel grid=(256,1,1) block=(512,1,1) lds=163840"
DIAG = False
import os
AB3 = os.environ.get('AB3', '')
CPF = False
STF3 = os.environ.get('STF3', '')
def gen_k3():
    a = Asm()
    nst = [0]
    def stamp():
        if not DIAG: return
        a.e(f"s_memtime s[{92}:{93}]")
        a.e("s_waitcnt lgkmcnt(0)"); a.lgq = []
        a.e(f"v_writelane_b32 v255, s92, {nst[0]}")
        nst[0] += 1
    a.e("s_cmp_ge_u32 s2, 256")
    a.e("s_cbranch_scc1 K3_exit")
    a.e("s_load_dwordx16 s[16:31], s[0:1], 0")
    a.e("s_load_dwordx16 s[32:47], s[0:1], 64")
    a.e("s_load_dwordx4 s[48:51], s[0:1], 128")
    a.e("v_lshrrev_b32 v1, 6, v0")
    a.e("s_nop 0")
    a.e("v_readfirstlane_b32 s3, v1")
    if os.environ.get('K3PRIO'):
        a.e("s_nop 3")
        for lv in (1, 2, 3):
            a.e(f"s_cmp_lt_u32 s3, {2 * lv}")
            a.e(f"s_cbranch_scc1 K3_pr")
            a.e(f"s_setprio {lv}")
        a.label("K3_pr")
    a.e(f"v_mbcnt_lo_u32_b32 v{L}, -1, 0")
    a.e(f"v_mbcnt_hi_u32_b32 v{L}, -1, v{L}")
    a.e(f"s_bfe_u32 s{S_T0}, s2, 0x20001")
    a.e(f"s_lshl_b32 s{S_T0}, s{S_T0}, 3")
    a.e(f"s_bfe_u32 s{S_T1}, s2, 0x30003")
    a.e(f"s_add_u32 s{S_RT}, s{S_T0}, s{S_T1}")
    a.e(f"s_and_b32 s{S_T0}, s2, 1")
    a.e(f"s_lshl_b32 s{S_T0}, s{S_T0}, 2")
    a.e(f"s_lshr_b32 s{S_T1}, s2, 6")
    a.e(f"s_add_u32 s{S_CT}, s{S_T0}, s{S_T1}")
    a.e(f"v_lshlrev_b32 v{V_L16}, 4, v{L}")
    a.e(f"s_mul_i32 s{S_LB}, s{S_WAVE}, {WSZ}")
    a.e(f"v_lshrrev_b32 v{X}, 2, v{L}")
    a.e(f"v_lshlrev_b32 v{V_WD}, 10, v{X}")
    a.e(f"v_and_b32 v{X}, 3, v{L}")
    a.e(f"v_lshrrev_b32 v{Y}, 4, v{L}")
    a.e(f"v_xor_b32 v{Y}, v{X}, v{Y}")
    a.e(f"v_lshl_add_u32 v{V_CD}, v{Y}, 4, v{V_WD}")
    a.e(f"v_lshl_add_u32 v{V_WD}, v{X}, 4, v{V_WD}")
    a.e(f"s_lshl_b32 s{S_CC}, s{S_CT}, 16")
    a.e(f"s_lshl_b32 s{S_T0}, s{S_WAVE}, 7")
    a.e(f"s_add_u32 s{S_CC}, s{S_CC}, s{S_T0}")
    a.e(f"s_lshl_b32 s{S_HG}, s{S_RT}, 17")
    a.e(f"s_lshl_b32 s{S_T0}, s{S_WAVE}, 13")
    a.e(f"s_add_u32 s{S_HG}, s{S_HG}, s{S_T0}")
    a.e(f"s_add_u32 s{S_HG}, s{S_HG}, {HF_OFF}")
    a.e(f"s_lshl_b32 s{S_CG}, s{S_RT}, 19")
    a.e(f"s_lshl_b32 s{S_T0}, s{S_WAVE}, 15")
    a.e(f"s_add_u32 s{S_CG}, s{S_CG}, s{S_T0}")
    a.e(f"s_add_u32 s{S_CG}, s{S_CG}, {CTX_OFF}")
    a.e(f"s_lshl_b32 s{S_WG}, s{S_WAVE}, 19")
    a.e(f"s_lshl_b32 s{S_T0}, s{S_CT}, 7")
    a.e(f"s_add_u32 s{S_WG}, s{S_WG}, s{S_T0}")
    a.e("s_waitcnt lgkmcnt(0)")
    rt_start(a, 90)
    if DIAG:
        a.e("s_memtime s[94:95]")
        a.e("s_waitcnt lgkmcnt(0)")
    srd(a, SRD_WS, P['ws'], P['ws'] + 1, 64 << 20)
    srd(a, SRD_WO, P['wo'], P['wo'] + 1, 4096 * 512 * 2)
    srd(a, SRD_CR, P['Cre'], P['Cre'] + 1, 512 * 512 * 2)
    srd(a, SRD_CI, P['Cim'], P['Cim'] + 1, 512 * 512 * 2)

    def w_issue(k):
        pos = (k % DEPTH) >> 1
        a.e(f"s_add_u32 m0, s{S_LB}, {pos*4096 + (k&1)*1024}")
        a.e(f"s_add_u32 s{S_T2}, s{S_WG}, {k*16384}")
        if 'nowo' not in AB3: a.vm(f"buffer_load_dwordx4 v{V_WD}, s[{SRD_WO}:{SRD_WO+3}], s{S_T2} offen lds", ('c', k))
        a.e(f"s_add_u32 m0, s{S_LB}, {pos*4096 + (k&1)*1024 + 2048}")
        a.e(f"s_add_u32 s{S_T2}, s{S_T2}, 64")
        if 'nowo' not in AB3: a.vm(f"buffer_load_dwordx4 v{V_WD}, s[{SRD_WO}:{SRD_WO+3}], s{S_T2} offen lds", ('c', k))
    def c_issue(k):
        r = CF0 + (k % DEPTH) * 8
        a.e(f"s_add_u32 s{S_T0}, s{S_CG}, {k*1024}")
        a.e(f"s_add_u32 s{S_T1}, s{S_CG}, {k*1024 + 262144}")
        if 'noctx' in AB3: return
        if 'same' in AB3:
            a.e(f"s_and_b32 s{S_T0}, s{S_T0}, 0x20fffff")
            a.e(f"s_and_b32 s{S_T1}, s{S_T1}, 0x20fffff")
        a.vm(f"buffer_load_dwordx4 v[{r}:{r+3}], v{V_L16}, s[{SRD_WS}:{SRD_WS+3}], s{S_T0} offen", ('c', k))
        a.vm(f"buffer_load_dwordx4 v[{r+4}:{r+7}], v{V_L16}, s[{SRD_WS}:{SRD_WS+3}], s{S_T1} offen", ('c', k))
    def w_read(k):
        pos = (k % DEPTH) >> 1
        a.wait(vm=('c', k | 1))
        r = WF0 + (k & 1) * 8
        for un in range(2):
            o = pos*4096 + un*2048 + (k & 1) * 512
            a.ds(f"ds_read_b64_tr_b16 v[{r+un*4}:{r+un*4+1}], v{V_TR} offset:{o}", ('w', k))
            a.ds(f"ds_read_b64_tr_b16 v[{r+un*4+2}:{r+un*4+3}], v{V_TR} offset:{o + 1024}", ('w', k))
    def c_dma(rnd):
        for mat in range(2):
            sd = SRD_CR if mat == 0 else SRD_CI
            for q in range(4):
                a.e(f"s_add_u32 m0, s{S_LB}, {CST + mat*4096 + q*1024}")
                a.e(f"s_add_u32 s{S_T0}, s{S_CC}, {rnd*64 + q*16384}")
                a.vm(f"buffer_load_dwordx4 v{V_CD}, s[{sd}:{sd+3}], s{S_T0} offen lds", ('cd', rnd))
    def h_issue(k):
        a.e(f"s_add_u32 s{S_T0}, s{S_HG}, {k*1024}")
        a.e(f"s_add_u32 s{S_T1}, s{S_HG}, {k*1024 + 65536}")
        r = HF0 + (k % 3) * 8
        a.vm(f"buffer_load_dwordx4 v[{r}:{r+3}], v{V_L16}, s[{SRD_WS}:{SRD_WS+3}], s{S_T0} offen", ('h', k))
        a.vm(f"buffer_load_dwordx4 v[{r+4}:{r+7}], v{V_L16}, s[{SRD_WS}:{SRD_WS+3}], s{S_T1} offen", ('h', k))

    c_dma(0)
    for k in range(3): h_issue(k)
    for k in range(DEPTH): c_issue(k); w_issue(k)
    if CPF:
        code_prefetch(a, "K3c", "K3e", 12288, 8, S_WAVE, V_L16, CI0, CI0 + 4, 86)
    srd(a, SRD_OUT, P['out'], P['out'] + 1, 2048 * 1024 * 4)
    srd(a, SRD_BX, P['Bx'], P['Bx'] + 1, 2048 * 512 * 2)
    srd(a, SRD_DS, P['Dskip'], P['Dskip'] + 1, 1024)
    a.e(f"v_lshrrev_b32 v{X}, 5, v{L}")
    a.e(f"v_lshlrev_b32 v{V_TR}, 8, v{X}")
    a.e(f"v_bfe_u32 v{X}, v{L}, 2, 2")
    a.e(f"v_lshl_add_u32 v{V_TR}, v{X}, 6, v{V_TR}")
    a.e(f"v_bfe_u32 v{X}, v{L}, 4, 1")
    a.e(f"v_lshl_add_u32 v{V_TR}, v{X}, 5, v{V_TR}")
    a.e(f"v_and_b32 v{X}, 3, v{L}")
    a.e(f"v_lshl_add_u32 v{V_TR}, v{X}, 3, v{V_TR}")
    a.e(f"v_add_u32 v{V_TR}, s{S_LB}, v{V_TR}")
    a.e(f"v_and_b32 v{X}, 31, v{L}")
    a.e(f"v_lshlrev_b32 v{Y}, 6, v{X}")
    a.e(f"s_add_u32 s{S_T0}, s{S_LB}, {CST}")
    a.e(f"v_add_u32 v{Y}, s{S_T0}, v{Y}")
    a.e(f"v_bfe_u32 v{Y+1}, v{L}, 2, 2")
    a.e(f"v_lshrrev_b32 v{Y+2}, 5, v{L}")
    a.e(f"v_xor_b32 v{Y+1}, v{Y+1}, v{Y+2}")
    a.e(f"v_lshl_add_u32 v{V_CR0}, v{Y+1}, 4, v{Y}")
    a.e(f"s_mov_b32 s{S_T3}, 0x05040100")
    a.e(f"s_mov_b32 s{S_IT}, 0x07060302")
    a.e(f"s_lshl_b32 s{S_T0}, s{S_CT}, 6")
    a.e(f"s_bfe_u32 s{S_T1}, s{S_WAVE}, 0x10001")
    a.e(f"s_lshl_b32 s{S_T1}, s{S_T1}, 5")
    a.e(f"s_add_u32 s{S_T0}, s{S_T0}, s{S_T1}")
    a.e(f"s_lshl_b32 s{S_T1}, s{S_RT}, 6")
    a.e(f"s_lshr_b32 s{S_T2}, s{S_WAVE}, 2")
    a.e(f"s_lshl_b32 s{S_T2}, s{S_T2}, 5")
    a.e(f"s_add_u32 s{S_T1}, s{S_T1}, s{S_T2}")
    a.e(f"s_and_b32 s{S_T2}, s{S_WAVE}, 1")
    a.e(f"s_lshl_b32 s{S_T2}, s{S_T2}, 4")
    a.e(f"s_add_u32 s{S_T1}, s{S_T1}, s{S_T2}")
    a.e(f"v_add_u32 v{X}, s{S_T0}, v{X}")
    a.e(f"v_lshlrev_b32 v{V_OO}, 2, v{X}")
    a.e(f"v_lshl_add_u32 v{V_OO}, v{Y+2}, 14, v{V_OO}")
    a.e(f"s_lshl_b32 s{S_OB}, s{S_T1}, 12")
    a.e(f"v_and_b32 v{X}, 31, v{L}")
    a.e(f"s_lshl_b32 s{S_T0}, s{S_CT}, 6")
    a.e(f"s_lshr_b32 s{S_T1}, s{S_WAVE}, 2")
    a.e(f"s_lshl_b32 s{S_T1}, s{S_T1}, 5")
    a.e(f"s_add_u32 s{S_T0}, s{S_T0}, s{S_T1}")
    a.e(f"v_add_u32 v{X}, s{S_T0}, v{X}")
    a.e(f"v_lshlrev_b32 v{V_DSO}, 1, v{X}")
    a.e(f"v_lshl_add_u32 v{V_XBO}, v{Y+2}, 12, v{V_DSO}")
    a.e(f"v_lshlrev_b32 v{V_OB}, 2, v{X}")
    a.e(f"v_lshl_add_u32 v{V_OB}, v{Y+2}, 14, v{V_OB}")
    a.e(f"s_lshl_b32 s{S_T1}, s{S_RT}, 6")
    a.e(f"s_and_b32 s{S_T2}, s{S_WAVE}, 3")
    a.e(f"s_lshl_b32 s{S_T2}, s{S_T2}, 3")
    a.e(f"s_add_u32 s{S_T1}, s{S_T1}, s{S_T2}")
    a.e(f"s_lshl_b32 s{S_OBB}, s{S_T1}, 12")
    a.e(f"s_lshl_b32 s{S_XB}, s{S_T1}, 10")
    a.e(f"s_add_u32 s{S_T0}, s{S_LB}, {CST}")
    a.e(f"v_add_u32 v{V_PB}, s{S_T0}, v{V_L16}")
    a.e(f"s_lshl_b32 s{S_T0}, s{S_WAVE}, 10")
    a.e(f"s_add_u32 s{S_T0}, s{S_T0}, {CST}")
    a.e(f"v_add_u32 v{V_RB}, s{S_T0}, v{V_L16}")
    a.e(f"s_lshl_b32 s{S_T0}, s{S_WAVE}, 14")
    a.e(f"v_add_u32 v{V_PW}, s{S_T0}, v{V_L16}")
    a.e(f"s_lshl_b32 s{S_T0}, s{S_WAVE}, 11")
    a.e(f"v_add_u32 v{V_RA}, s{S_T0}, v{V_L16}")
    BW = CI0
    def b_group(G):
        rnd, Gp = G >> 1, G & 1
        if Gp == 0: a.wait(vm=('cd', rnd))
        if Gp: a.e(f"v_xor_b32 v{X}, 32, v{V_CR0}")
        va = X if Gp else V_CR0
        for un in range(2):
            for mat in range(2):
                r = CI0 + (un * 2 + mat) * 4
                a.ds(f"ds_read_b128 v[{r}:{r+3}], v{va} offset:{mat*4096 + un*2048}", ('cr', G))
        a.wait(lg=('cr', G))
        for st in range(2):
            k = 2 * G + st
            for un in range(2):
                re, im = CI0 + un * 8 + 2 * st, CI0 + un * 8 + 4 + 2 * st
                w = BF0 + un * 4
                a.e(f"v_perm_b32 v{w}, v{im}, v{re}, s{S_T3}")
                a.e(f"v_perm_b32 v{w+1}, v{im}, v{re}, s{S_IT}")
                a.e(f"v_perm_b32 v{w+2}, v{im+1}, v{re+1}, s{S_T3}")
                a.e(f"v_perm_b32 v{w+3}, v{im+1}, v{re+1}, s{S_IT}")
            a.e("s_nop 1")
            a.wait(vm=('h', k))
            for mt in range(2):
                for un in range(2):
                    D = vr(ACB + (mt * 2 + un) * 16, 16)
                    a.e(mfma(D, vr(HF0 + (k % 3) * 8 + mt * 4, 4), vr(BF0 + un * 4, 4), "0" if k == 0 else D))
            if k + 3 < 8: h_issue(k + 3)
    NKA = 32
    XB = HF0
    def xb_loads():
        a.vm(f"buffer_load_ushort v{XB+8}, v{V_DSO}, s[{SRD_DS}:{SRD_DS+3}], 0 offen", 'xb')
        for ps in range(2):
            a.e(f"s_add_u32 s{S_U0}, s{S_XB}, {ps * 32768}")
            for r in range(4):
                a.vm(f"buffer_load_ushort v{XB+ps*4+r}, v{V_XBO}, s[{SRD_BX}:{SRD_BX+3}], s{S_U0} offen offset:{r * 1024}", 'xb')
    def b_write(ps):
        for t in range(2):
            for g in range(4):
                r = ACB + (2 * ps + t) * 16 + 4 * g
                a.ds(f"ds_write_b128 v{V_PB}, v[{r}:{r+3}] offset:{t*4096 + g*1024}", 'bw')
        a.wait(lg='bw')
        a.e("s_barrier")
    def b_reduce(ps):
        d = ACB + ps * 32
        for w in range(8):
            if w: a.e(f"v_add_u32 v{X}, {w * WSZ}, v{V_RB}")
            a.ds(f"ds_read_b128 v[{d+4*w}:{d+4*w+3}], v{X if w else V_RB}", 'br')
        a.wait(lg='br')
        a.e("s_barrier")
        for st in (16, 8, 4):
            for r in range(st): a.e(f"v_add_f32 v{d+r}, v{d+r}, v{d+st+r}")
        a.wait(vm='xb')
        x = XB + ps * 4
        if ps == 0:
            a.e(f"v_lshlrev_b32 v{XB+8}, 16, v{XB+8}")
        for r in range(4):
            a.e(f"v_lshlrev_b32 v{x+r}, 16, v{x+r}")
            a.e(f"v_mul_f32 v{x+r}, v{x+r}, v{XB+8}")
        for r in (0, 2):
            a.e(f"v_cvt_pk_bf16_f32 v{x+r}, v{x+r}, v{x+r+1}")
            a.e(f"v_and_b32 v{x+r+1}, 0xffff0000, v{x+r}")
            a.e(f"v_lshlrev_b32 v{x+r}, 16, v{x+r}")
            a.e(f"v_add_f32 v{d+r}, v{d+r}, v{x+r}")
            a.e(f"v_add_f32 v{d+r+1}, v{d+r+1}, v{x+r+1}")
        a.e(f"s_add_u32 s{S_U0}, s{S_OBB}, {ps * 131072}")
        for r in range(4):
            a.vm(f"buffer_store_dword v{d+r}, v{V_OB}, s[{SRD_OUT}:{SRD_OUT+3}], s{S_U0} offen offset:2048 {STF3}", 'o')
            if r < 3: a.e(f"s_add_u32 s{S_U0}, s{S_U0}, 4096")
    hooks = {3: lambda: b_group(0), 5: lambda: (b_group(1), c_dma(1)), 12: lambda: b_group(2), 14: lambda: (b_group(3), xb_loads()),
             17: lambda: b_write(0), 19: lambda: b_reduce(0), 21: lambda: b_write(1), 23: lambda: b_reduce(1)}
    stamp()
    w_read(0)
    for k in range(NKA):
        if k % 4 == 0: stamp()
        if k + 1 < NKA: w_read(k + 1)
        a.wait(lg=('w', k))
        for mt in range(2):
            for un in range(2):
                D = vr(ACA + (mt * 2 + un) * 16, 16)
                a.e(mfma(D, vr(CF0 + (k % DEPTH) * 8 + mt * 4, 4), vr(WF0 + (k & 1) * 8 + un * 4, 4), "0" if k == 0 else D))
        if (k & 1) and k + DEPTH < NKA:
            c_issue(k + DEPTH - 1); w_issue(k + DEPTH - 1); c_issue(k + DEPTH); w_issue(k + DEPTH)
        if k in hooks: hooks[k]()
    stamp()
    a.e(f"v_add_u32 v{X}, s{S_LB}, v{V_L16}")
    a.e("s_nop 7")
    a.e("s_nop 3")
    for t in range(4):
        for g in range(4):
            a.e(f"ds_write_b128 v{X}, v[{ACA+t*16+4*g}:{ACA+t*16+4*g+3}] offset:{t*4096 + g*1024}")
    for w in range(1, 3): a.e(f"v_add_u32 v{CF0+w}, {3 * w * WSZ}, v{V_RA}")
    a.e("s_waitcnt lgkmcnt(0)")
    a.e("s_barrier")
    dst = ACA
    for w in range(8):
        for g in range(2):
            r = dst + w * 8 + 4 * g
            a.e(f"ds_read_b128 v[{r}:{r+3}], v{V_RA if w < 3 else CF0 + w // 3} offset:{(w % 3) * WSZ + g * 1024}")
    a.e("s_waitcnt lgkmcnt(0)")
    for st in (32, 16, 8):
        for r in range(st): a.e(f"v_add_f32 v{dst+r}, v{dst+r}, v{dst+st+r}")
    for r in range(0, 8, 2):
        a.e(f"v_cvt_pk_bf16_f32 v{CF0+r}, v{dst+r}, v{dst+r+1}")
        a.e(f"v_and_b32 v{CF0+r+1}, 0xffff0000, v{CF0+r}")
        a.e(f"v_lshlrev_b32 v{CF0+r}, 16, v{CF0+r}")
    for r in range(8):
        if (r & 3) == 0: a.e(f"s_add_u32 s{S_U0}, s{S_OB}, {8 * (r >> 2) * 4096}")
        else: a.e(f"s_add_u32 s{S_U0}, s{S_U0}, 4096")
        a.e(f"buffer_store_dword v{CF0+r}, v{V_OO}, s[{SRD_OUT}:{SRD_OUT+3}], s{S_U0} offen {STF3}")
    if DIAG:
        stamp()
        a.e("s_waitcnt vmcnt(0)")
        stamp()
        a.e(f"v_mov_b32 v254, s94")
        a.e(f"v_writelane_b32 v255, s94, 63")
        a.e(f"s_lshl_b32 s{S_T0}, s2, 3")
        a.e(f"s_add_u32 s{S_T0}, s{S_T0}, s{S_WAVE}")
        a.e(f"s_lshl_b32 s{S_T0}, s{S_T0}, 8")
        a.e(f"s_add_u32 s{S_T0}, s{S_T0}, {63 << 20}")
        a.e(f"v_lshrrev_b32 v{X}, 2, v{V_L16}")
        a.e(f"buffer_store_dword v255, v{X}, s[{SRD_WS}:{SRD_WS+3}], s{S_T0} offen")
    rt_end(a, 90, 2, SRD_WS, S_WAVE)
    a.label("K3_exit")
    a.e("s_endpgm")
    a.label("K3e")
    return kernel_wrap("k3_kernel", a.text(), 256, 256)
```

```python
from common import *
import struct, math
def f2u(x):
    return "0x%08x" % struct.unpack("<I", struct.pack("<f", x))[0]

P = dict(A_x=16, ckv=18, wq=20, wuk=22, wuv=24, wo=26, Bx=28, Lre=30, Lim=32, Bre=34, Bim=36, Cre=38, Cim=40,
         logdt=42, Dskip=44, out=46, dbg=48, ws=50)
S_WAVE, S_H, S_I = 3, 4, 5
S_T0, S_T1, S_T2, S_T3 = 6, 7, 8, 9
S_GRP, S_WQ, S_J, S_SW, S_ROW0, S_FIRST = 10, 11, 12, 13, 14, 15
SRD_X, SRD_WQ, SRD_KV, SRD_O, SRD_E = 52, 56, 60, 64, 68
S_FIN, S_TJ, S_TJ1, S_TJ2, S_LD, S_KVH, S_NOCHK, S_SKIP = 72, 73, 74, 75, 76, 77, 78, 79
S_M = 80
S_XL, S_XG, S_WB, S_ROWA, S_PAR, S_ROWB = 88, 89, 90, 91, 92, 93
S_THR, S_NEG = 94, 95
S_POST = 99

O0, S0, P0, Q0, NM0, FR0 = 0, 64, 96, 112, 144, 160
NF = 8
V_RD, V_CO, V_PS0, V_PS1, V_D, V_LANE16, V_COL = 224, 225, 228, 229, 230, 231, 232
V_M = 226
LA = [152, 156]
ONES = 208
BIAS = 64.0
TT = 234
V_TRW, V_XQ0, V_XQ1, V_XR = 251, 247, 248, 249
V_WQD = 253
XF0 = 64
WF0 = 192

LDS_QST = 131072
LDS_WR = 98304
CSCALE = (128 ** -0.5) * 1.4426950408889634
THR = 2.0 ** 60
NEGBIG = -1.0e30
DIAG = False
import os
STF = os.environ.get('STF2', 'sc1')
BM_POS = 0
PRIO = False
SPLIT = False
CPF = False
DMAM = int(os.environ.get('DMAM', '0'))

class Proxy:
    def __init__(self, t): self.__dict__['t'] = t
    def __getattr__(self, k): return getattr(self.__dict__['t'], k)
    def __setattr__(self, k, v):
        if k == 't': self.__dict__['t'] = v
        else: setattr(self.__dict__['t'], k, v)

def m16(d, a_, b_, c):
    return f"v_mfma_f32_16x16x32_bf16 {d}, {a_}, {b_}, {c}"

def gen_k2():
    A_ = Asm()
    a = Proxy(A_)
    def st_now(idx):
        if not DIAG: return
        a.e("s_memtime s[100:101]")
        a.e("s_waitcnt lgkmcnt(0)")
        a.e(f"v_writelane_b32 v255, s100, {idx}")
    a.e("s_cmp_ge_u32 s2, 256")
    a.e("s_cbranch_scc1 K2_exit")
    a.e("s_load_dwordx16 s[16:31], s[0:1], 0")
    a.e("s_load_dwordx16 s[32:47], s[0:1], 64")
    a.e("s_load_dwordx4 s[48:51], s[0:1], 128")
    a.e("v_lshrrev_b32 v1, 6, v0")
    a.e("v_and_b32 v233, 63, v0")
    a.e(f"v_readfirstlane_b32 s{S_WAVE}, v1")
    a.e(f"s_and_b32 s{S_H}, s2, 31")
    a.e(f"s_lshr_b32 s{S_I}, s2, 5")
    a.e(f"s_lshr_b32 s{S_GRP}, s{S_WAVE}, 2")
    a.e(f"s_and_b32 s{S_WQ}, s{S_WAVE}, 3")
    a.e(f"v_lshlrev_b32 v{V_LANE16}, 4, v233")
    a.e("s_waitcnt lgkmcnt(0)")
    rt_start(a, 100)
    st_now(0)
    if DIAG:
        a.e("s_memrealtime s[100:101]")
        a.e("s_waitcnt lgkmcnt(0)")
        a.e("v_writelane_b32 v255, s100, 60")
    srd(a, SRD_O, P['ws'], P['ws'] + 1, 64 << 20)
    srd_off(a, SRD_E, P['ws'], P['ws'] + 1, E32_OFF, 64 * 4096)

    srd(a, SRD_X, P['A_x'], P['A_x'] + 1, 2048 * 512 * 2)
    srd(a, SRD_WQ, P['wq'], P['wq'] + 1, 512 * 4096 * 2)
    srd(a, SRD_KV, P['ws'], P['ws'] + 1, 32 << 20)
    a.e(f"s_sub_u32 s{S_T0}, 15, s{S_I}")
    a.e(f"s_lshl_b32 s{S_T0}, s{S_T0}, 7")
    a.e(f"s_lshl_b32 s{S_T1}, s{S_WQ}, 5")
    a.e(f"s_add_u32 s{S_ROWA}, s{S_T0}, s{S_T1}")
    a.e(f"s_lshl_b32 s{S_T0}, s{S_I}, 7")
    a.e(f"s_add_u32 s{S_ROWB}, s{S_T0}, s{S_T1}")
    a.e(f"s_lshl_b32 s{S_T0}, s{S_I}, 1")
    a.e(f"s_add_u32 s{S_T1}, s{S_T0}, 1")
    a.e(f"s_cmp_eq_u32 s{S_GRP}, 0")
    a.e(f"s_cselect_b32 s{S_ROW0}, s{S_ROWA}, s{S_ROWB}")
    a.e(f"s_cselect_b32 s{S_SW}, 99, s{S_T1}")
    a.e(f"s_sub_u32 s{S_SKIP}, 15, s{S_T0}")
    a.e(f"s_lshl_b32 s{S_XL}, s{S_WAVE}, 13")
    a.e(f"s_cmp_lt_u32 s{S_WAVE}, 6")
    a.e(f"s_mov_b32 s{S_T1}, 32768")
    a.e(f"s_cselect_b32 s{S_T0}, 16384, s{S_T1}")
    a.e(f"s_add_u32 s{S_XL}, s{S_XL}, s{S_T0}")
    a.e(f"s_lshl_b32 s{S_XG}, s{S_ROW0}, 10")
    X = TT; Y = TT + 1; Z = TT + 2
    a.e(f"v_lshrrev_b32 v{X}, 3, v233")
    a.e(f"v_and_b32 v{Y}, 7, v233")
    for q, dst in enumerate([V_XQ0, V_XQ1]):
        a.e(f"v_add_u32 v{Z}, {8*q}, v{X}")
        a.e(f"v_bfe_u32 v{Z+1}, v{Z}, 1, 3")
        a.e(f"v_xor_b32 v{Z+1}, v{Z+1}, v{Y}")
        a.e(f"v_lshlrev_b32 v{Z+1}, 4, v{Z+1}")
        a.e(f"v_lshl_add_u32 v{Z+1}, v{Z}, 10, v{Z+1}")
        a.e(f"v_subrev_u32 v{dst}, {1024*q}, v{Z+1}")
    a.e(f"v_and_b32 v{X}, 15, v233")
    a.e(f"v_lshlrev_b32 v{Y}, 7, v{X}")
    a.e(f"v_add_u32 v{Y}, s{S_XL}, v{Y}")
    a.e(f"v_bfe_u32 v{Z}, v233, 1, 3")
    a.e(f"v_lshrrev_b32 v{Z+1}, 4, v233")
    a.e(f"v_xor_b32 v{Z}, v{Z}, v{Z+1}")
    a.e(f"v_lshl_add_u32 v{V_XR}, v{Z}, 4, v{Y}")
    a.e(f"v_xor_b32 v{V_XR+1}, 64, v{V_XR}")
    a.e(f"v_lshlrev_b32 v{Z+1}, 2, v{Z+1}")
    a.e(f"v_sub_u32 v{V_COL}, v{X}, v{Z+1}")
    a.e(f"v_lshlrev_b32 v{V_CO}, 4, v{X}")
    a.e(f"v_bfe_u32 v{Y}, v233, 4, 1")
    a.e(f"v_lshl_add_u32 v{V_CO}, v{Y}, 9, v{V_CO}")
    a.e(f"v_lshrrev_b32 v{Y}, 5, v233")
    a.e(f"v_lshl_add_u32 v{V_CO}, v{Y}, 10, v{V_CO}")
    WQD = [V_WQD, V_WQD + 1]
    a.e(f"v_lshlrev_b32 v{Y}, 1, v{Y}")
    a.e(f"v_and_b32 v{X}, 3, v233")
    a.e(f"v_xor_b32 v{Y}, v{X}, v{Y}")
    a.e(f"v_lshlrev_b32 v{WQD[0]}, 4, v{Y}")
    a.e(f"v_lshrrev_b32 v{X}, 2, v233")
    a.e(f"v_lshl_add_u32 v{WQD[0]}, v{X}, 13, v{WQD[0]}")
    a.e(f"v_add_u32 v{WQD[1]}, {16*8192 - 1024}, v{WQD[0]}")
    a.e(f"s_lshl_b32 s{S_WB}, s{S_H}, 8")
    a.e(f"s_lshr_b32 s{S_T0}, s{S_WAVE}, 1")
    a.e(f"s_lshl_b32 s{S_T0}, s{S_T0}, 6")
    a.e(f"s_add_u32 s{S_WB}, s{S_WB}, s{S_T0}")
    a.e(f"s_and_b32 s{S_T0}, s{S_WAVE}, 1")
    a.e(f"s_lshl_b32 s{S_T0}, s{S_T0}, 18")
    a.e(f"s_add_u32 s{S_WB}, s{S_WB}, s{S_T0}")
    a.e(f"v_lshrrev_b32 v{X}, 4, v233")
    a.e(f"v_lshlrev_b32 v{V_TRW}, 9, v{X}")
    a.e(f"v_bfe_u32 v{Y}, v233, 2, 2")
    a.e(f"v_lshl_add_u32 v{V_TRW}, v{Y}, 6, v{V_TRW}")
    a.e(f"v_and_b32 v{Y}, 3, v233")
    a.e(f"v_lshl_add_u32 v{V_TRW}, v{Y}, 3, v{V_TRW}")
    a.e(f"v_and_b32 v{X}, 1, v{X}")
    a.e(f"v_lshl_add_u32 v{V_TRW}, v{X}, 5, v{V_TRW}")
    a.e(f"v_add_u32 v{V_TRW}, {LDS_WR}, v{V_TRW}")
    a.e(f"v_xor_b32 v{V_TRW+1}, 32, v{V_TRW}")
    a.e(f"s_lshl_b32 s{S_T0}, s{S_GRP}, 16")
    a.e(f"s_lshl_b32 s{S_T1}, s{S_WQ}, 12")
    a.e(f"s_add_u32 s{S_LD}, s{S_T0}, s{S_T1}")
    a.e(f"s_lshl_b32 s{S_KVH}, s{S_H}, 19")
    a.e(f"s_add_u32 s{S_KVH}, s{S_KVH}, s{S_T1}")
    a.e(f"v_add_u32 v{V_RD}, s{S_T0}, v{V_LANE16}")
    a.e(f"s_mov_b32 s{S_THR}, {f2u(THR)}")
    a.e(f"s_mov_b32 s{S_NEG}, {f2u(NEGBIG)}")

    def w_dma(n):
        a.e(f"s_lshl_b32 s{S_T0}, s{S_WAVE}, 11")
        a.e(f"s_add_u32 m0, s{S_T0}, {LDS_WR + (n % 3) * 16384}")
        a.e(f"s_add_u32 s{S_T0}, s{S_WB}, {n * 524288}")
        for q in range(2):
            a.vm(f"buffer_load_dwordx4 v{WQD[q]}, s[{SRD_WQ}:{SRD_WQ+3}], s{S_T0} offen offset:{1024*q} lds", ('w', n))
    def x_dma(c):
        for qq in range(2):
            a.e(f"s_add_u32 m0, s{S_XL}, {(c & 1) * 4096 + qq * 2048}")
            a.e(f"s_add_u32 s{S_T0}, s{S_XG}, {c * 128 + qq * 16384}")
            a.vm(f"buffer_load_dwordx4 v{V_XQ0}, s[{SRD_X}:{SRD_X+3}], s{S_T0} offen lds", ('x', c))
            a.vm(f"buffer_load_dwordx4 v{V_XQ1}, s[{SRD_X}:{SRD_X+3}], s{S_T0} offen offset:1024 lds", ('x', c))
    def x_read(c):
        a.wait(vm=('x', c))
        for up in range(2):
            for qt in range(2):
                r = XF0 + ((c & 3) * 4 + up * 2 + qt) * 4
                a.ds(f"ds_read_b128 v[{r}:{r+3}], v{V_XR+up} offset:{(c & 1) * 4096 + qt * 2048}", ('xr', c))
    def kv_dma(which, s_tile, buf_expr_off, tag):
        a.e(f"s_lshl_b32 s{S_T0}, s{s_tile}, 14")
        a.e(f"s_add_u32 s{S_T0}, s{S_T0}, s{S_KVH}")
        if which == 'V': a.e(f"s_add_u32 s{S_T0}, s{S_T0}, {VF_OFF}")
        for q in range(4):
            a.vm(f"buffer_load_dwordx4 v{V_LANE16}, s[{SRD_KV}:{SRD_KV+3}], s{S_T0} offen offset:{1024*q} lds", tag)

    SC, SG = 96, 97
    E0 = 128
    B0 = 160
    CL, CL8, CL32, CLS, CCO = 176, 178, 180, 182, 184
    VA, VB_, VSUB, VCH = 186, 187, 188, 189
    S_HS = 98
    def scan_loads():
        a.e(f"s_lshl_b32 s{S_T2}, s2, 3")
        a.e(f"s_add_u32 s{S_T2}, s{S_T2}, s{S_WAVE}")
        a.e(f"s_lshr_b32 s{SC}, s{S_T2}, 5")
        a.e(f"s_and_b32 s{SG}, s{S_T2}, 31")
        a.e(f"v_and_b32 v{VCH}, 15, v233")
        a.e(f"v_lshrrev_b32 v{VSUB}, 4, v233")
        a.e(f"s_lshl_b32 s{S_T2}, s{SG}, 7")
        a.e(f"v_lshlrev_b32 v{VA}, 3, v{VCH}")
        a.e(f"v_add_u32 v{VA}, s{S_T2}, v{VA}")
        a.e(f"s_mov_b32 s{S_T3}, {TAB_OFF}")
        a.e(f"s_add_u32 s{S_T2}, s{S_T3}, {2*4096}")
        a.vm(f"buffer_load_dwordx2 v[{CL32}:{CL32+1}], v{VA}, s[{SRD_O}:{SRD_O+3}], s{S_T2} offen", 'sc')
        a.e(f"v_lshlrev_b32 v{VB_}, 16, v{VSUB}")
        a.e(f"v_sub_u32 v{VB_}, v{VA}, v{VB_}")
        a.e(f"s_lshl_b32 s{S_T2}, s{SC}, 12")
        a.e(f"s_sub_u32 s{S_T2}, s{S_T2}, {16*4096}")
        a.e(f"v_add_u32 v{VB_}, s{S_T2}, v{VB_}")
        for i in range(16):
            a.vm(f"buffer_load_dwordx2 v[{E0+2*i}:{E0+2*i+1}], v{VB_}, s[{SRD_E}:{SRD_E+3}], 0 offen", ('e', i))
            if i < 15: a.e(f"v_add_u32 v{VB_}, 0x1000, v{VB_}")
        a.vm(f"buffer_load_dwordx2 v[{CL}:{CL+1}], v{VA}, s[{SRD_O}:{SRD_O+3}], s{S_T3} offen", 'sc2')
        a.e(f"s_add_u32 s{S_T2}, s{S_T3}, 4096")
        a.vm(f"buffer_load_dwordx2 v[{CL8}:{CL8+1}], v{VA}, s[{SRD_O}:{SRD_O+3}], s{S_T2} offen", 'sc2')
        a.e(f"s_add_u32 s{S_T2}, s{S_T3}, {6*4096}")
        a.vm(f"buffer_load_dwordx2 v[{CCO}:{CCO+1}], v{VA}, s[{SRD_O}:{SRD_O+3}], s{S_T2} offen", 'sc2')
        a.e(f"v_lshl_add_u32 v{VB_}, v{VSUB}, 12, v{VA}")
        a.e(f"s_add_u32 s{S_T2}, s{S_T3}, {2*4096}")
        a.vm(f"buffer_load_dwordx2 v[{CLS}:{CLS+1}], v{VB_}, s[{SRD_O}:{SRD_O+3}], s{S_T2} offen", 'sc2')
        a.e(f"s_lshl_b32 s{S_T2}, s{SC}, 17")
        a.e(f"s_lshr_b32 s{S_T3}, s{SG}, 1")
        a.e(f"s_lshl_b32 s{S_T3}, s{S_T3}, 13")
        a.e(f"s_add_u32 s{S_T2}, s{S_T2}, s{S_T3}")
        a.e(f"s_and_b32 s{S_T3}, s{SG}, 1")
        a.e(f"s_lshl_b32 s{S_T3}, s{S_T3}, 8")
        a.e(f"s_add_u32 s{S_T2}, s{S_T2}, s{S_T3}")
        a.e(f"s_add_u32 s{S_T2}, s{S_T2}, {BU_OFF}")
        a.e(f"s_add_u32 s{S_T3}, s{S_T2}, 4096")
        a.e(f"v_lshlrev_b32 v{VB_}, 4, v{VCH}")
        a.e(f"v_lshl_add_u32 v{VB_}, v{VSUB}, 10, v{VB_}")
        for part in range(2):
            for hf in range(2):
                r = B0 + part * 8 + hf * 4
                a.vm(f"buffer_load_dwordx4 v[{r}:{r+3}], v{VB_}, s[{SRD_O}:{SRD_O+3}], s{S_T2 if part == 0 else S_T3} offen offset:{512*hf}", 'bu')
        a.e(f"s_lshl_b32 s{S_HS}, s{SC}, 6")
        a.e(f"s_lshl_b32 s{S_T2}, s{SG}, 1")
        a.e(f"s_add_u32 s{S_HS}, s{S_HS}, s{S_T2}")
        a.e(f"s_lshl_b32 s{S_HS}, s{S_HS}, 10")
        a.e(f"s_add_u32 s{S_HS}, s{S_HS}, {HF_OFF}")


    w_dma(0); x_dma(0)
    a.e("s_barrier")
    x_dma(1); w_dma(1); w_dma(2)
    if CPF:
        code_prefetch(a, "K2c", "K2e", 49152, 8, S_WAVE, V_LANE16, 216, 220, 84)
    a.e(f"s_mov_b32 s{S_TJ}, 0")

    AC, T0_, T1_ = 190, TT + 4, TT + 6
    scan = []
    def S(f): scan.append(f)
    def cfma(d, x, l, b_re, b_im, t):
        a.e(f"v_fma_f32 v{t}, v{x}, v{l}, v{b_re}")
        a.e(f"v_fma_f32 v{t+1}, v{x}, v{l+1}, v{b_im}")
        a.e(f"v_fma_f32 v{d}, -v{x+1}, v{l+1}, v{t}")
        a.e(f"v_fma_f32 v{d+1}, v{x+1}, v{l}, v{t+1}")
    def cmul(d, x, l, t):
        a.e(f"v_mul_f32 v{t}, v{x}, v{l}")
        a.e(f"v_mul_f32 v{t+1}, v{x}, v{l+1}")
        a.e(f"v_fma_f32 v{d}, -v{x+1}, v{l+1}, v{t}")
        a.e(f"v_fma_f32 v{d+1}, v{x+1}, v{l}, v{t+1}")
    def f():
        a.e(f"v_cmp_lt_u32 s[{S_M}:{S_M+1}], 0, v{VSUB}")
        a.e(f"v_cmp_lt_u32 s[{S_M+2}:{S_M+3}], 1, v{VSUB}")
        a.e(f"v_cmp_lt_u32 s[{S_M+4}:{S_M+5}], 2, v{VSUB}")
        a.wait(vm='bu')
    S(f)
    S(lambda: cfma(AC, E0, CL32, E0 + 2, E0 + 3, T0_))
    for i in range(2, 16):
        S(lambda i=i: cfma(AC, AC, CL32, E0 + 2 * i, E0 + 2 * i + 1, T0_))
    def f():
        a.e(f"v_cndmask_b32 v{CLS}, 1.0, v{CLS}, s[{S_M}:{S_M+1}]")
        a.e(f"v_cndmask_b32 v{CLS+1}, 0, v{CLS+1}, s[{S_M}:{S_M+1}]")
    S(f)
    S(lambda: cmul(AC, AC, CLS, T0_))
    for sw in ("v_permlane32_swap_b32", "v_permlane16_swap_b32"):
        def f(sw=sw):
            a.e(f"v_mov_b32 v{T0_}, v{AC}")
            a.e(f"v_mov_b32 v{T0_+1}, v{AC+1}")
            a.e("s_nop 1")
            a.e(f"{sw} v{AC}, v{T0_}")
            a.e(f"{sw} v{AC+1}, v{T0_+1}")
        S(f)
        def f():
            a.e(f"v_add_f32 v{AC}, v{AC}, v{T0_}")
            a.e(f"v_add_f32 v{AC+1}, v{AC+1}, v{T0_+1}")
        S(f)
    def bu(k, part): return B0 + part * 8 + k
    EN = E0
    def f():
        a.e(f"v_fma_f32 v{T0_}, v{bu(0,0)}, v{CL}, v{bu(1,0)}")
        a.e(f"v_fma_f32 v{T0_+1}, v{bu(0,0)}, v{CL+1}, v{bu(1,1)}")
        a.e(f"v_fma_f32 v{EN}, -v{bu(0,1)}, v{CL+1}, v{T0_}")
        a.e(f"v_fma_f32 v{EN+1}, v{bu(0,1)}, v{CL}, v{T0_+1}")
    S(f)
    for k in range(2, 8):
        S(lambda k=k: cfma(EN, EN, CL, bu(k, 0), bu(k, 1), T0_))
    def f():
        a.e(f"v_lshlrev_b32 v{VA}, 2, v{VCH}")
        for jp in range(3):
            if jp: a.e(f"v_add_u32 v{VA}, 64, v{VA}")
            a.ds(f"ds_bpermute_b32 v{EN+2+2*jp}, v{VA}, v{EN}", 'bp')
            a.ds(f"ds_bpermute_b32 v{EN+3+2*jp}, v{VA}, v{EN+1}", 'bp')
    S(f)
    def f():
        a.e(f"v_bfe_u32 v{VB_}, v{VCH}, 2, 1")
        a.e(f"v_lshlrev_b32 v{VB_}, 10, v{VB_}")
        a.e(f"v_bfe_u32 v{T1_}, v{VCH}, 3, 1")
        a.e(f"v_lshl_add_u32 v{VB_}, v{T1_}, 9, v{VB_}")
    S(f)
    def f():
        a.e(f"v_and_b32 v{T1_}, 3, v{VCH}")
        a.e(f"v_lshl_add_u32 v{VB_}, v{T1_}, 2, v{VB_}")
        a.e(f"v_lshl_add_u32 v{VB_}, v{VSUB}, 7, v{VB_}")
    S(f)
    for jp in range(3):
        def f(jp=jp):
            a.wait(lg='bp')
            cfma(T1_, AC, CL8, EN + 2 + 2 * jp, EN + 3 + 2 * jp, T0_)
        S(f)
        def f(jp=jp):
            a.e(f"v_cndmask_b32 v{AC}, v{AC}, v{T1_}, s[{S_M+2*jp}:{S_M+2*jp+1}]")
            a.e(f"v_cndmask_b32 v{AC+1}, v{AC+1}, v{T1_+1}, s[{S_M+2*jp}:{S_M+2*jp+1}]")
        S(f)
    for k in range(8):
        S(lambda k=k: cfma(AC, AC, CL, bu(k, 0), bu(k, 1), T0_))
        S(lambda k=k: cmul(EN + 8 + 2 * (k & 3), AC, CCO, T0_))
        def f(k=k):
            h = EN + 8 + 2 * (k & 3)
            a.e(f"v_cvt_pk_bf16_f32 v{EN+16+k}, v{h}, -v{h+1}")
            a.vm(f"buffer_store_dword v{EN+16+k}, v{VB_}, s[{SRD_O}:{SRD_O+3}], s{S_HS} offen offset:{16*k}", 'hs')
        S(f)

    st_now(1)
    x_read(0)
    a.wait(lg=('xr', 0)); x_dma(2)
    x_read(1)
    a.wait(lg=('xr', 1)); x_dma(3)
    wfr = [(n, up, un, t) for n in range(8) for up in range(2) for un in range(4) for t in range(2)]
    def w_issue(f):
        n, up, un, t = wfr[f]
        r = WF0 + (f % NF) * 4
        off = (n % 3) * 16384 + un * 4096 + up * 2048
        a.ds(f"ds_read_b64_tr_b16 v[{r}:{r+1}], v{V_TRW+t} offset:{off}", ('wf', f))
        a.ds(f"ds_read_b64_tr_b16 v[{r+2}:{r+3}], v{V_TRW+t} offset:{off+256}", ('wf', f))
    sl = Rec(); a.t = sl; scan_loads(); a.t = A_
    sc = Rec(); a.t = sc
    for it in scan: it()
    a.t = A_
    scan[:] = []
    a.wait(vm=('w', 0))
    a.e("s_barrier")
    fn = 0; landed = 0
    for f, (n, up, un, t) in enumerate(wfr):
        fi = f & 15
        if fi == 0:
            if DIAG: st_now(48 + n); a.lgq = []
            if n + 1 < 8: a.wait(vm=('w', n + 1))
            a.e("s_barrier")
            landed = n + 1
            if n >= 1 and n + 2 < 8: w_dma(n + 2)
            if f == 0:
                while fn < NF: w_issue(fn); fn += 1
        a.wait(lg=('wf', f))
        if fi == 0: a.wait(lg=('xr', n))
        for qt in range(2):
            D = vr(O0 + (qt * 8 + 2 * un + t) * 4, 4)
            a.e(m16(D, vr(WF0 + (f % NF) * 4, 4), vr(XF0 + ((n & 3) * 4 + up * 2 + qt) * 4, 4), "0" if (n == 0 and up == 0) else D))
        if fn < len(wfr) and fn - NF <= f and wfr[fn][0] <= landed:
            w_issue(fn); fn += 1
        if fi == 5 and n + 2 < 8: x_read(n + 2)
        if fi == 10 and n + 4 < 8:
            a.wait(lg=('xr', n + 2)); x_dma(n + 4)
        if f == 52:
            a.e(f"s_mov_b32 m0, s{S_LD}")
            kv_dma('K', S_TJ, 0, 'k0')
        if len(sl):
            for _ in range(2):
                if len(sl): sl.pop(A_)
        elif f >= 56:
            for _ in range(5):
                if len(sc): sc.pop(A_)
    assert not len(sc), len(sc)
    a.wait(vm='k0')
    a.e("s_barrier")
    st_now(2)
    if DIAG:
        a.e("s_memrealtime s[100:101]")
        a.e("s_waitcnt lgkmcnt(0)")
        a.e("v_writelane_b32 v255, s100, 61")
    if DIAG: a.e("s_mov_b32 s100, 4"); a.e("s_mov_b32 s0, 0")
    a.e(f"s_mov_b32 s{S_TJ1}, 1")
    a.e(f"s_add_u32 m0, s{S_LD}, 32768")
    kv_dma('K', S_TJ1, 0, 'st')
    a.e(f"s_add_u32 m0, s{S_LD}, {32768 + 16384}")
    kv_dma('V', S_TJ, 0, 'st')
    a.e(f"s_mov_b32 s{S_T1}, {f2u(CSCALE)}")
    for r in range(64):
        a.e(f"v_mul_f32 v{O0+r}, s{S_T1}, v{O0+r}")
    for k in range(32):
        a.e(f"v_cvt_pk_bf16_f32 v{Q0+k}, v{O0+2*k}, v{O0+2*k+1}")
    for r in range(64): a.e(f"v_mov_b32 v{O0+r}, 0")
    for r in range(16): a.e(f"v_mov_b32 v{NM0+r}, 0")
    a.e(f"v_mov_b32 v{V_M}, 0")
    a.e(f"v_mov_b32 v{V_M+1}, 0")
    for r in range(4): a.e(f"v_mov_b32 v{ONES+r}, 0x3f803f80")
    a.e(f"s_mov_b32 s{S_J}, 0")
    a.e(f"s_mov_b32 s{S_FIRST}, 1")
    a.e(f"s_mov_b32 s{S_FIN}, 0")
    a.e(f"s_mov_b32 s{S_PAR}, 0")
    a.e(f"s_mov_b32 s{S_NOCHK}, 0")
    a.e(f"s_add_u32 s{S_T0}, s{S_SKIP}, 2")
    a.e(f"s_cmp_lt_u32 s{S_SW}, 2")
    a.e(f"s_cselect_b32 s{S_TJ2}, s{S_T0}, 2")
    a.e(f"s_lshl_b32 s{S_T0}, s{S_WQ}, 13")
    a.e(f"s_add_u32 s{S_T0}, s{S_T0}, {LDS_QST}")
    a.e(f"v_add_u32 v{V_XR}, s{S_T0}, v{V_LANE16}")
    a.e(f"s_cmp_eq_u32 s{S_GRP}, 0")
    a.e("s_cbranch_scc0 K2_qk0")
    for k in range(8):
        a.e(f"ds_write_b128 v{V_XR}, v[{Q0+4*k}:{Q0+4*k+3}] offset:{1024*k}")
    a.e("s_waitcnt lgkmcnt(0)")
    a.e("s_barrier")
    a.label("K2_qk0")
    a.lgq = []

    def frag_list(qk, pv):
        fl = []
        if qk: fl += [('K', kt, ds) for kt in range(4) for ds in range(4)]
        if pv: fl += [('V', T, dt) for T in range(2) for dt in range(8)]
        return fl
    def f_issue(fl, i):
        kind, x, y = fl[i]
        r = FR0 + (i % NF) * 4
        off = (x * 4 + y) * 1024 if kind == 'K' else 16384 + (x * 8 + y) * 1024
        a.ds(f"ds_read_b128 v[{r}:{r+3}], v{V_RD} offset:{off}", ('f', i))
    S1 = [S0 + 16, 192]
    def m_phase(fl, bar_after, pdst, side=None, after_qk=None):
        nk = sum(1 for f in fl if f[0] == 'K')
        for i, (kind, x, y) in enumerate(fl):
            if i == bar_after:
                a.e("s_barrier")
                if DIAG: a.e("s_memtime s[0:1]")
            if i == nk and after_qk:
                while side is not None and len(side): side.pop(A_)
                after_qk()
            a.wait(lg=('f', i))
            fr = vr(FR0 + (i % NF) * 4, 4)
            for qt in range(2):
                if kind == 'K':
                    D = vr((S0 if qt == 0 else S1[pdst]) + x * 4, 4)
                    a.e(m16(D, fr, vr(Q0 + (qt * 4 + y) * 4, 4), vr(NM0 + qt * 4, 4) if y == 0 else D))
                else:
                    D = vr(O0 + (qt * 8 + y) * 4, 4)
                    a.e(m16(D, fr, vr(P0 + (qt * 2 + x) * 4, 4), D))
                if side is not None and len(side) and (qt == 0 or (i & 1)):
                    side.pop(A_)
            if i + NF < len(fl): f_issue(fl, i + NF)
            if kind == 'V' and y == 3:
                for qt in range(2):
                    a.e(m16(vr(LA[qt], 4), vr(ONES, 4), vr(P0 + (qt * 2 + x) * 4, 4), vr(LA[qt], 4)))

    fl = frag_list(True, False)
    for i in range(NF): f_issue(fl, i)
    m_phase(fl, -1, 0)

    def store_ctx(srow, tag):
        a.e(f"s_lshl_b32 s{S_T0}, s{srow}, 13")
        a.e(f"s_lshl_b32 s{S_T1}, s{S_H}, 13")
        a.e(f"s_add_u32 s{S_T0}, s{S_T0}, s{S_T1}")
        a.e(f"s_add_u32 s{S_T0}, s{S_T0}, {CTX_OFF}")
        a.e(f"s_add_u32 s{S_T1}, s{S_T0}, 4096")
        for f in range(8):
            qt, Pp = f >> 2, f & 3
            t = P0 + (f % 4) * 4
            for k in range(4):
                a.e(f"v_cvt_pk_bf16_f32 v{t+k}, v{O0+f*8+2*k}, v{O0+f*8+2*k+1}")
            a.e(f"buffer_store_dwordx4 v[{t}:{t+3}], v{V_CO}, s[{SRD_O}:{SRD_O+3}], s{S_T0 if Pp < 2 else S_T1} offen offset:{2048*(Pp&1) + 256*qt} {STF}")

    def exp_block(q, sbs, dma):
        tmp = [TT, TT + 2, TT + 4, TT + 6]
        prs = [(sbs[qt] + kt * 4 + 2 * hh, P0 + (qt * 2 + (kt >> 1)) * 4 + (kt & 1) * 2 + hh) for qt in range(2) for kt in range(4) for hh in range(2)]
        def consume(n):
            t = tmp[n % 4]
            q.e(f"v_cvt_pk_bf16_f32 v{prs[n][1]}, v{t}, v{t+1}")
            if n == 2: q.e(f"v_or3_b32 v{V_PS0}, v{prs[0][1]}, v{prs[1][1]}, v{prs[2][1]}")
            elif n > 2 and n % 2 == 0: q.e(f"v_or3_b32 v{V_PS0}, v{V_PS0}, v{prs[n-1][1]}, v{prs[n][1]}")
            elif n == 15: q.e(f"v_or_b32 v{V_PS0}, v{V_PS0}, v{prs[n][1]}")
        for n, (sa, pd) in enumerate(prs):
            t = tmp[n % 4]
            if dma and n in (0, 8): q.e(f"s_add_u32 m0, s{S_XG}, {0 if n == 0 else 16384}")
            q.e(f"v_exp_f32 v{t}, v{sa}")
            if dma and not (n & 1): q.e(f"buffer_load_dwordx4 v{V_LANE16}, s[{SRD_KV}:{SRD_KV+3}], s{S_T2 if n < 8 else S_T3} offen offset:{1024*((n >> 1) & 3)} lds")
            q.e(f"v_exp_f32 v{t+1}, v{sa+1}")
            if n >= 2: consume(n - 2)
        consume(14); consume(15)

    def scal_next():
        a.e(f"s_mov_b32 s{S_TJ}, s{S_TJ1}")
        a.e(f"s_mov_b32 s{S_TJ1}, s{S_TJ2}")
        a.e(f"s_add_u32 s{S_T0}, s{S_J}, 3")
        a.e(f"s_add_u32 s{S_T1}, s{S_T0}, s{S_SKIP}")
        a.e(f"s_cmp_gt_u32 s{S_T0}, s{S_SW}")
        a.e(f"s_cselect_b32 s{S_TJ2}, s{S_T1}, s{S_T0}")
        a.e(f"s_min_u32 s{S_TJ2}, s{S_TJ2}, 31")
        a.e(f"s_xor_b32 s{S_PAR}, s{S_PAR}, 0x8000")
        a.e(f"s_add_u32 s{S_J}, s{S_J}, 1")
        scal_dma()
    def scal_dma():
        a.e(f"s_lshl_b32 s{S_T2}, s{S_TJ2}, 14")
        a.e(f"s_add_u32 s{S_T2}, s{S_T2}, s{S_KVH}")
        a.e(f"s_lshl_b32 s{S_T3}, s{S_TJ1}, 14")
        a.e(f"s_add_u32 s{S_T3}, s{S_T3}, s{S_KVH}")
        a.e(f"s_add_u32 s{S_T3}, s{S_T3}, {VF_OFF}")
        a.e(f"s_add_u32 s{S_XG}, s{S_LD}, s{S_PAR}")
        a.e(f"s_lshl_b32 s{S_XL}, s{S_TJ}, 6")
        a.e(f"s_add_u32 s{S_WB}, s{S_XL}, 63")
        a.e(f"s_cmp_gt_u32 s{S_WB}, s{S_ROW0}")
        a.e(f"s_cselect_b32 s{S_WB}, 1, s{S_FIRST}")
        a.e(f"s_cmp_eq_u32 s{S_J}, s{S_SW}")
        a.e(f"s_cselect_b32 s{S_POST}, 1, 0")
        a.e(f"s_cmp_eq_u32 s{S_J}, 15")
        a.e(f"s_cselect_b32 s{S_POST}, 1, s{S_POST}")

    def body(sfx, p, last):
        a.e("s_waitcnt vmcnt(0)" if not last else "s_waitcnt vmcnt(3)")
        a.e("s_barrier")
        if DIAG:
            a.e("s_memtime s[96:97]")
            a.e("s_waitcnt lgkmcnt(0)")
            a.e("s_sub_u32 m0, s100, 1")
            a.e("v_writelane_b32 v255, s0, m0")
            a.e("s_mov_b32 m0, s100")
            a.e("v_writelane_b32 v255, s96, m0")
            a.e("s_add_u32 s100, s100, 2")
            a.e(f"s_add_u32 m0, s{S_J}, 39")
            a.e("s_min_u32 m0, m0, 47")
            a.e("v_writelane_b32 v255, s86, m0")
        fl = frag_list(not last, True)
        a.lgq = []
        for i in range(NF): f_issue(fl, i)
        a.e(f"s_cmp_lg_u32 s{S_WB}, 0")
        a.e(f"s_cbranch_scc1 K2_spec{sfx}")
        a.label(f"K2_exp{sfx}")
        exp_block(a, [S0, S1[p]], not last)
        a.e(f"v_and_b32 v{V_PS0}, 0x40004000, v{V_PS0}")
        a.e(f"v_cmp_ne_u32 vcc, 0, v{V_PS0}")
        a.e(f"s_cbranch_vccnz K2_chk{sfx}")
        a.label(f"K2_ok{sfx}")
        if not last:
            a.e(f"s_cmp_lg_u32 s{S_POST}, 0")
            a.e(f"s_cbranch_scc1 K2_post{sfx}")
            a.label(f"K2_postret{sfx}")
        if DIAG: a.e("s_memtime s[86:87]")
        side = None
        def after_qk():
            if not last:
                scal_next()
        m_phase(fl, 0, p ^ 1, side, after_qk)
        if not last: a.e(f"v_xor_b32 v{V_RD}, 0x8000, v{V_RD}")

    def xlane(op, r0, t0, n=2):
        for sw in ("v_permlane32_swap_b32", "v_permlane16_swap_b32"):
            for k in range(n): a.e(f"v_mov_b32 v{t0+k}, v{r0+k}")
            a.e("s_nop 1")
            for k in range(n): a.e(f"{sw} v{r0+k}, v{t0+k}")
            a.e("s_nop 1")
            for k in range(n): a.e(f"{op} v{r0+k}, v{r0+k}, v{t0+k}")
    def rowmax(d, b):
        a.e(f"v_max3_f32 v{d}, v{b}, v{b+1}, v{b+2}")
        for r in range(3, 15, 2): a.e(f"v_max3_f32 v{d}, v{d}, v{b+r}, v{b+r+1}")
        a.e(f"v_max_f32 v{d}, v{d}, v{b+15}")
    def outofline(sfx, p, last):
        SB = [S0, S1[p]]
        a.label(f"K2_spec{sfx}")
        a.e(f"s_cmp_eq_u32 s{S_FIN}, 0")
        a.e(f"s_cbranch_scc1 K2_nofin{sfx}")
        a.e("s_nop 3")
        a.e(f"v_rcp_f32 v{TT}, v{LA[0]}")
        a.e(f"v_rcp_f32 v{TT+1}, v{LA[1]}")
        for r in range(8): a.e(f"v_mov_b32 v{LA[0]+r}, 0")
        a.e(f"s_mov_b32 s{S_FIN}, 0")
        for r in range(64): a.e(f"v_mul_f32 v{O0+r}, v{O0+r}, v{TT + (r >> 5)}")
        store_ctx(S_ROWB, 'c')
        for r in range(64): a.e(f"v_mov_b32 v{O0+r}, 0")
        a.label(f"K2_nofin{sfx}")
        a.e(f"s_add_u32 s{S_T1}, s{S_XL}, 63")
        a.e(f"s_cmp_gt_u32 s{S_T1}, s{S_ROW0}")
        a.e(f"s_cbranch_scc0 K2_nomask{sfx}")
        a.e(f"s_sub_u32 s{S_T1}, s{S_ROW0}, s{S_XL}")
        a.e(f"v_add_u32 v{V_D}, s{S_T1}, v{V_COL}")
        a.e(f"v_mov_b32 v{TT+11}, s{S_NEG}")
        for g in range(8):
            qt, kt = g >> 2, g & 3
            for k in range(4):
                a.e(f"v_cmp_le_i32 s[{S_M+2*k}:{S_M+2*k+1}], {16*kt + k - 16*qt}, v{V_D}")
            for k in range(4):
                r = SB[qt] + kt * 4 + k
                a.e(f"v_cndmask_b32 v{r}, v{TT+11}, v{r}, s[{S_M+2*k}:{S_M+2*k+1}]")
        a.label(f"K2_nomask{sfx}")
        a.e(f"s_cmp_eq_u32 s{S_FIRST}, 0")
        a.e(f"s_cbranch_scc1 K2_exp{sfx}")
        rowmax(TT, SB[0]); rowmax(TT + 1, SB[1])
        xlane("v_max_f32", TT, TT + 2)
        for qt in range(2):
            a.e(f"v_max_f32 v{TT+qt}, {f2u(-1.0e20)}, v{TT+qt}")
            a.e(f"v_mov_b32 v{V_M+qt}, v{TT+qt}")
            a.e(f"v_add_f32 v{TT+qt}, {f2u(BIAS)}, v{TT+qt}")
            a.e(f"v_sub_f32 v{NM0+4*qt}, 0, v{TT+qt}")
            for r in range(1, 4): a.e(f"v_mov_b32 v{NM0+4*qt+r}, v{NM0+4*qt}")
            for r in range(16): a.e(f"v_sub_f32 v{SB[qt]+r}, v{SB[qt]+r}, v{TT+qt}")
        a.e(f"s_mov_b32 s{S_FIRST}, 0")
        a.e(f"s_branch K2_exp{sfx}")
        a.label(f"K2_chk{sfx}")
        rowmax(TT, SB[0]); rowmax(TT + 1, SB[1])
        xlane("v_max_f32", TT, TT + 2)
        for qt in range(2):
            a.e(f"v_add_f32 v{TT+qt}, {f2u(BIAS)}, v{TT+qt}")
            a.e(f"v_max_f32 v{TT+qt}, 0, v{TT+qt}")
            a.e(f"v_exp_f32 v{TT+2+qt}, -v{TT+qt}")
            a.e(f"v_add_f32 v{V_M+qt}, v{V_M+qt}, v{TT+qt}")
            a.e(f"v_sub_f32 v{NM0+4*qt}, v{NM0+4*qt}, v{TT+qt}")
            for r in range(1, 4): a.e(f"v_mov_b32 v{NM0+4*qt+r}, v{NM0+4*qt}")
            for r in range(4): a.e(f"v_mul_f32 v{LA[qt]+r}, v{LA[qt]+r}, v{TT+2+qt}")
            for r in range(32): a.e(f"v_mul_f32 v{O0+32*qt+r}, v{O0+32*qt+r}, v{TT+2+qt}")
            for r in range(16): a.e(f"v_sub_f32 v{SB[qt]+r}, v{SB[qt]+r}, v{TT+qt}")
        exp_block(a, SB, False)
        a.e(f"s_branch K2_ok{sfx}")
        if not last:
            a.label(f"K2_post{sfx}")
            a.e(f"s_cmp_eq_u32 s{S_J}, s{S_SW}")
            a.e(f"s_cbranch_scc0 K2_nosw{sfx}")
            for k in range(8):
                a.e(f"ds_read_b128 v[{Q0+4*k}:{Q0+4*k+3}], v{V_XR} offset:{1024*k}")
            for r in range(8): a.e(f"v_mov_b32 v{NM0+r}, 0")
            a.e(f"s_mov_b32 s{S_FIRST}, 1")
            a.e(f"s_mov_b32 s{S_FIN}, 1")
            a.e(f"s_mov_b32 s{S_ROW0}, s{S_ROWA}")
            a.e("s_waitcnt lgkmcnt(0)")
            a.label(f"K2_nosw{sfx}")
            if p == 1:
                a.e(f"s_cmp_eq_u32 s{S_J}, 15")
                a.e(f"s_cbranch_scc1 K2_pf")
            a.e(f"s_branch K2_postret{sfx}")

    def pf_block():
        a.label("K2_pf")
        a.e(f"s_lshl_b32 s{S_T0}, s2, 3")
        a.e(f"s_add_u32 s{S_T0}, s{S_T0}, s{S_WAVE}")
        a.e(f"s_lshl_b32 s{S_T1}, s{S_T0}, 11")
        srd(a, SRD_X, P['wo'], P['wo'] + 1, 4096 * 512 * 2)
        a.e(f"buffer_load_dwordx4 v[216:219], v{V_LANE16}, s[{SRD_X}:{SRD_X+3}], s{S_T1} offen")
        a.e(f"buffer_load_dwordx4 v[216:219], v{V_LANE16}, s[{SRD_X}:{SRD_X+3}], s{S_T1} offen offset:1024")
        a.e(f"s_and_b32 s{S_T1}, s{S_T0}, 511")
        a.e(f"s_lshl_b32 s{S_T1}, s{S_T1}, 10")
        a.e(f"s_bitcmp1_b32 s{S_T0}, 9")
        a.e(f"s_cselect_b32 s{SRD_WQ}, s{P['Cre']}, s{P['Cim']}")
        a.e(f"s_cselect_b32 s{SRD_WQ+1}, s{P['Cre']+1}, s{P['Cim']+1}")
        a.e(f"s_and_b32 s{SRD_WQ+1}, s{SRD_WQ+1}, 0xffff")
        a.e(f"s_mov_b32 s{SRD_WQ+2}, {512*512*2}")
        a.e(f"s_mov_b32 s{SRD_WQ+3}, 0x00020000")
        a.e(f"buffer_load_dwordx4 v[216:219], v{V_LANE16}, s[{SRD_WQ}:{SRD_WQ+3}], s{S_T1} offen")
        a.e("s_branch K2_postretB")
    a.e(f"v_xor_b32 v{V_RD}, 0x8000, v{V_RD}")
    scal_dma()
    a.label("K2_loop")
    body("A", 0, False)
    body("B", 1, False)
    a.e(f"s_cmp_lt_u32 s{S_J}, 16")
    a.e("s_cbranch_scc1 K2_loop")
    body("Z", 0, True)
    a.e(f"s_lshl_b32 s{S_T0}, s{S_WQ}, 14")
    a.e(f"s_add_u32 s{S_T0}, s{S_T0}, 65536")
    a.e(f"v_add_u32 v{TT+2}, s{S_T0}, v{V_LANE16}")
    a.e(f"s_lshl_b32 s{S_T0}, s{S_WQ}, 10")
    a.e(f"s_add_u32 s{S_T0}, s{S_T0}, {LDS_QST}")
    a.e(f"v_add_u32 v{TT+3}, s{S_T0}, v{V_LANE16}")
    a.e("s_barrier")
    if DIAG:
        a.e("s_memtime s[96:97]")
        a.e("s_waitcnt lgkmcnt(0)")
        a.e("v_writelane_b32 v255, s0, 37")
        a.e("v_writelane_b32 v255, s96, 38")
        a.e("s_memrealtime s[96:97]")
        a.e("s_waitcnt lgkmcnt(0)")
        a.e("v_writelane_b32 v255, s96, 62")
        a.e(f"s_lshl_b32 s{S_T0}, s2, 3")
        a.e(f"s_add_u32 s{S_T0}, s{S_T0}, s{S_WAVE}")
        a.e(f"s_lshl_b32 s{S_T0}, s{S_T0}, 8")
        a.e(f"s_add_u32 s{S_T0}, s{S_T0}, {63 << 20}")
        a.e(f"v_lshrrev_b32 v{TT+4}, 2, v{V_LANE16}")
        a.e(f"buffer_store_dword v255, v{TT+4}, s[{SRD_O}:{SRD_O+3}], s{S_T0} offen")
    a.e(f"s_cmp_eq_u32 s{S_GRP}, 0")
    a.e("s_cbranch_scc1 K2_merge")
    a.e(f"v_mov_b32 v{ONES}, v{V_M}")
    a.e(f"v_mov_b32 v{ONES+1}, v{V_M+1}")
    a.e(f"v_mov_b32 v{ONES+2}, v{LA[0]}")
    a.e(f"v_mov_b32 v{ONES+3}, v{LA[1]}")
    a.e(f"ds_write_b128 v{TT+3}, v[{ONES}:{ONES+3}]")
    for k in range(16):
        a.e(f"ds_write_b128 v{TT+2}, v[{O0+4*k}:{O0+4*k+3}] offset:{1024*k}")
    a.e("s_waitcnt vmcnt(0) lgkmcnt(0)")
    a.e("s_barrier")
    rt_end(a, 100, 1, SRD_O, S_WAVE)
    a.e("s_endpgm")
    a.label("K2_merge")
    ML = ONES
    a.e(f"ds_read_b128 v[{ML}:{ML+3}], v{TT+3}")
    for k in range(16):
        a.e(f"ds_read_b128 v[{64+4*k}:{64+4*k+3}], v{TT+2} offset:{1024*k}")
    a.e("s_waitcnt lgkmcnt(15)")
    for qt in range(2):
        a.e(f"v_max_f32 v{TT}, v{V_M+qt}, v{ML+qt}")
        a.e(f"v_sub_f32 v{TT+4+qt}, v{V_M+qt}, v{TT}")
        a.e(f"v_sub_f32 v{TT+6+qt}, v{ML+qt}, v{TT}")
    for k in range(4): a.e(f"v_exp_f32 v{TT+4+k}, v{TT+4+k}")
    a.e("s_nop 0")
    for qt in range(2):
        a.e(f"v_mul_f32 v{TT+8+qt}, v{TT+4+qt}, v{LA[qt]}")
        a.e(f"v_fmac_f32 v{TT+8+qt}, v{TT+6+qt}, v{ML+2+qt}")
    a.e(f"v_rcp_f32 v{TT+8}, v{TT+8}")
    a.e(f"v_rcp_f32 v{TT+9}, v{TT+9}")
    a.e("s_nop 0")
    for qt in range(2):
        a.e(f"v_mul_f32 v{TT+4+qt}, v{TT+4+qt}, v{TT+8+qt}")
        a.e(f"v_mul_f32 v{TT+6+qt}, v{TT+6+qt}, v{TT+8+qt}")
    for r in range(64): a.e(f"v_mul_f32 v{O0+r}, v{O0+r}, v{TT+4+(r>>5)}")
    a.e("s_waitcnt lgkmcnt(0)")
    for r in range(64): a.e(f"v_fmac_f32 v{O0+r}, v{64+r}, v{TT+6+(r>>5)}")
    store_ctx(S_ROWA, 'c')
    rt_end(a, 100, 1, SRD_O, S_WAVE)
    a.label("K2_exit")
    a.e("s_endpgm")
    outofline('A', 0, False)
    outofline('B', 1, False)
    outofline('Z', 0, True)
    pf_block()
    a.label('K2e')
    return kernel_wrap("k2_kernel", a.text(), 256, 256)
```
